```python
import torch

def _softmax(x, axis=-1):
    return torch.softmax(x, dim=axis)
def _gelu(x):
    return torch.nn.functional.gelu(x, approximate="tanh")
def _silu(x):
    return torch.nn.functional.silu(x)
def _sigmoid(x):
    return torch.sigmoid(x)
def _layernorm(x, axis=-1, eps=1e-5):
    m = x.mean(dim=axis, keepdim=True)
    v = x.var(dim=axis, keepdim=True, unbiased=False)
    return (x - m) / torch.sqrt(v + eps)
def _scatter_add(tgt, idx, src, axis=0):
    return tgt.clone().index_add_(axis, idx, src)
def _segment_sum(src, seg, n):
    out = torch.zeros((n,) + src.shape[1:], dtype=src.dtype)
    return out.index_add_(0, seg, src)
def _pad(x, pw):
    flat = tuple(v for pair in reversed(pw) for v in pair)
    return torch.nn.functional.pad(x, flat)

kernel_name = 'interleave_layers__sliding_local_dilated__glu_gated_geglu__prompt'

def setup_inputs():

    _w = (lambda a: (lambda t: t.to(torch.bfloat16) if t.is_floating_point() else t)(torch.as_tensor(a)))
    def _A_setup():
        B, S, D = 1, 2048, 640
        return {
            "x": _w((lambda *s: torch.randn(*s, dtype=torch.bfloat16) * 0.05)(B, S, D)),
            "wqkv": _w((lambda *s: torch.randn(*s, dtype=torch.bfloat16) * 0.05)(D, 3 * D)),
            "wo": _w((lambda *s: torch.randn(*s, dtype=torch.bfloat16) * 0.05)(D, D)),
        }
    _A_in = _A_setup()

    def _B_setup():
        B, S, Dm, Df = 1, 2048, 640, 1728
        return {
            "x": _w((lambda *s: torch.randn(*s, dtype=torch.bfloat16) * 0.05)(B, S, Dm)),
            "w_gate": _w((lambda *s: torch.randn(*s, dtype=torch.bfloat16) * 0.8)(Dm, Df) * (Dm ** -0.5)),
            "w_up": _w((lambda *s: torch.randn(*s, dtype=torch.bfloat16) * 0.8)(Dm, Df) * (Dm ** -0.5)),
            "w_down": _w((lambda *s: torch.randn(*s, dtype=torch.bfloat16) * 0.8)(Df, Dm) * (Df ** -0.5)),
        }
    _B_in = _B_setup()

    return {
        "A_x": _A_in["x"],
        "A_wqkv": _A_in["wqkv"],
        "A_wo": _A_in["wo"],
        "B_x": _B_in["x"],
        "B_w_gate": _B_in["w_gate"],
        "B_w_up": _B_in["w_up"],
        "B_w_down": _B_in["w_down"],
    }

def reference(A_x, A_wqkv, A_wo, B_x, B_w_gate, B_w_up, B_w_down):
    def _A_ref(x, wqkv, wo):
        B, S, D = x.shape
        H = 32; Dh = D // H
        W, dil = 8, 2
        qkv = (lambda x, *d: x.permute(*d))((x @ wqkv).reshape(B, S, 3, H, Dh), 2, 0, 3, 1, 4)
        q, k, v = qkv[0], qkv[1], qkv[2]
        scale = Dh ** -0.5
        pos = torch.arange(S)
        off = torch.arange(W) * dil
        idx = pos[:, None] - off[None, :]
        mask = idx >= 0
        idx_c = torch.where(mask, idx, 0).reshape(-1)
        kg = k[:, :, idx_c, :].reshape(B, H, S, W, Dh)
        vg = v[:, :, idx_c, :].reshape(B, H, S, W, Dh)
        logits = torch.einsum("bhsd,bhswd->bhsw", q, kg) * scale
        logits = torch.where(mask[None, None, :, :], logits, -1e9)
        attn = _softmax(logits, axis=-1)
        o = torch.einsum("bhsw,bhswd->bhsd", attn, vg)
        return (lambda x, *d: x.permute(*d))(o, 0, 2, 1, 3).reshape(B, S, D) @ wo

    def _B_ref(x, w_gate, w_up, w_down):
        g = torch.einsum("bsd,df->bsf", x, w_gate)
        u = torch.einsum("bsd,df->bsf", x, w_up)
        h = _gelu(g) * u
        return torch.einsum("bsf,fd->bsd", h, w_down)

    x = A_x
    x = x + _A_ref(_layernorm(x, axis=-1), A_wqkv, A_wo)
    x = x + _B_ref(_layernorm(x, axis=-1), B_w_gate, B_w_up, B_w_down)
    x = x + _A_ref(_layernorm(x, axis=-1), A_wqkv, A_wo)
    x = x + _B_ref(_layernorm(x, axis=-1), B_w_gate, B_w_up, B_w_down)
    return x
```

```python
class Asm:
    uid = 0
    def __init__(self):
        self.lines = []
        self.vm = []
        self.lg = []
    def __call__(self, s):
        for ln in s.split("\n"):
            self.lines.append(ln)
    def c(self, s):
        self.lines.append("; " + s)
    def label(self, name):
        self.lines.append(name + ":")
    def newlabel(self, base):
        Asm.uid += 1
        return f"L_{base}_{Asm.uid}"
    def vmem(self, s, tag=None):
        self.lines.append(s)
        self.vm.append(tag)
    def lds(self, s, tag=None):
        self.lines.append(s)
        self.lg.append(tag)
    def _cnt_after(self, lst, tags):
        if not isinstance(tags, (list, set)):
            tags = [tags]
        last = -1
        for i, t in enumerate(lst):
            if t in tags:
                last = i
        assert last >= 0, f"tag {tags} not found in {lst}"
        return len(lst) - 1 - last, last
    def wait_vm(self, tags, extra=""):
        n, last = self._cnt_after(self.vm, tags)
        n = min(n, 63)
        self.lines.append(f"s_waitcnt vmcnt({n}){extra}")
        keep = n
        self.vm = self.vm[len(self.vm) - keep:] if keep > 0 else []
    def wait_vm_all(self):
        self.lines.append("s_waitcnt vmcnt(0)")
        self.vm = []
    def wait_lg(self, tags):
        n, last = self._cnt_after(self.lg, tags)
        n = min(n, 15)
        self.lines.append(f"s_waitcnt lgkmcnt({n})")
        self.lg = self.lg[len(self.lg) - n:] if n > 0 else []
    def wait_lg_all(self):
        self.lines.append("s_waitcnt lgkmcnt(0)")
        self.lg = []
    def has_vm(self, tag):
        return tag in self.vm
    def has_lg(self, tag):
        return tag in self.lg
    def text(self):
        return "\n".join(self.lines)

def vr(base, n=1):
    return f"v{base}" if n == 1 else f"v[{base}:{base+n-1}]"
def ar(base, n=1):
    return f"a{base}" if n == 1 else f"a[{base}:{base+n-1}]"
def sr(base, n=1):
    return f"s{base}" if n == 1 else f"s[{base}:{base+n-1}]"
```

```python
S = 2048; D = 640; F = 1728; H = 32; DH = 20
NTEAM = 16
KS_D = 20
KS_F = 54
def al(x, a=4096): return (x + a - 1) // a * a
off = 0
def take(n):
    global off
    o = off
    off = al(off + n)
    return o
WQ  = take(16 * 4 * 20 * 2 * 1024)
WO  = take(8 * 2 * 10 * 5 * 1024)
WG  = take(16 * 20 * 7 * 2 * 1024)
WD  = take(8 * 9 * 2 * 3 * 5 * 1024)
CS2 = take(2 * 112 * 2 * 16 * 4)
ACT_D = NTEAM * KS_D * 8 * 1024
ACT_F = NTEAM * KS_F * 8 * 1024
STB = NTEAM * 8 * 1024
X0  = take(ACT_D)
ST0 = take(STB)
O_  = [take(ACT_D), take(ACT_D)]
X1  = [take(ACT_D), take(ACT_D)]
ST1 = [take(STB), take(STB)]
H_  = [take(ACT_F), take(ACT_F)]
X2  = take(ACT_D)
ST2 = take(STB)
HALO2 = take(NTEAM * 20 * 1024)
HST2  = take(NTEAM * 1024)
FLAGS = take(16384)
WS_USED = off
FL_TEAM = FLAGS
FL_HALO = FLAGS + 4096
FL_TICK = FLAGS + 8192

def qcol(hp, G, c):
    if G >= 30: return None
    seg, e = divmod(G, 5)
    hh, typ = divmod(seg, 3)
    return typ * 640 + (2 * hp + hh) * 20 + e * 4 + c

def kperm(g, j):
    return 4 * g + j if j < 4 else 16 + 4 * g + (j - 4)

if __name__ == "__main__":
    for k, v in list(globals().items()):
        if k.isupper() and isinstance(v, (int, list)): print(k, v)
```

```python
from asmlib import *
from layout import *

P0_NWG = 326
P0_LDS = 40960

def gen_p0(name="p0_kernel"):
    a = Asm()
    a(f".globl {name}\n.p2align 8\n.type {name},@function\n{name}:")
    a(f"s_cmp_ge_u32 s2, {P0_NWG}")
    a(f"s_cbranch_scc1 L_p0_end")
    a("s_load_dwordx2 s[4:5], s[0:1], 72")
    a("v_lshrrev_b32 v1, 6, v0")
    a("v_and_b32 v2, 63, v0")
    a("v_lshlrev_b32 v3, 4, v2")
    a("v_readfirstlane_b32 s16, v1")
    a("v_and_b32 v4, 3, v2")
    a("v_bfe_u32 v5, v2, 2, 2")
    a("v_lshrrev_b32 v6, 4, v2")
    a("s_cmp_lt_u32 s2, 108")
    a("s_cbranch_scc1 L_p0_wgu")
    a("s_cmp_lt_u32 s2, 188")
    a("s_cbranch_scc1 L_p0_wq")
    a("s_cmp_lt_u32 s2, 252")
    a("s_cbranch_scc1 L_p0_x")
    a("s_cmp_lt_u32 s2, 306")
    a("s_cbranch_scc1 L_p0_wd")
    a("s_branch L_p0_wo")

    def ws_srd():
        a("s_mov_b32 s12, s4"); a("s_mov_b32 s13, s5")
        a(f"s_mov_b32 s14, {WS_USED}"); a("s_mov_b32 s15, 0x20000")
    def src_srd(karg_off, nbytes):
        a(f"s_load_dwordx2 s[6:7], s[0:1], {karg_off}")
        a("s_waitcnt lgkmcnt(0)")
        a("s_mov_b32 s8, s6"); a("s_mov_b32 s9, s7")
        a(f"s_mov_b32 s10, {nbytes}"); a("s_mov_b32 s11, 0x20000")
        ws_srd()

    def load_rows1280(swz):
        for par in range(2):
            for ph in range(5):
                d = 10 + par * 5 + ph
                a(f"v_add_u32 v20, {64*ph}, v2")
                a(f"v_mul_u32_u24 v21, 205, v20")
                a(f"v_lshrrev_b32 v21, 14, v21")
                a(f"v_mul_u32_u24 v22, 80, v21")
                a(f"v_sub_u32 v22, v20, v22")
                a(f"s_lshl_b32 s21, s16, 1")
                a(f"s_add_u32 s21, s21, {par}")
                a(f"s_and_b32 s21, s21, 3")
                a(f"s_lshl_b32 s21, s21, 2")
                a(f"v_add_u32 v23, s21, v21")
                if swz == 'w':
                    a(f"v_and_b32 v23, 7, v23")
                    a(f"v_lshlrev_b32 v23, 1, v23")
                a(f"v_xor_b32 v22, v22, v23")
                a(f"v_lshlrev_b32 v22, 4, v22")
                a(f"v_mul_u32_u24 v21, 1280, v21")
                a(f"v_add_u32 v{d}, v21, v22")
        a("s_lshl_b32 s21, s16, 1")
        a("s_mul_i32 s22, s21, 5120")
        a("s_add_u32 s22, s22, s20")
        a("s_mul_i32 s23, s21, 5120")
        for par in range(2):
            for ph in range(5):
                a(f"s_add_u32 m0, s23, {par*5120 + ph*1024}")
                if par == 1 and ph == 0:
                    a("s_add_u32 s22, s22, 5120")
                else:
                    a("s_nop 0")
                a.vmem(f"buffer_load_dwordx4 v{10+par*5+ph}, s[8:11], s22 offen lds", "dma")
    for p in range(320):
        assert (p * 205) >> 14 == p // 80

    def w640_body(ct_stride):
        load_rows1280('w')
        a("v_lshlrev_b32 v20, 2, v6")
        a("v_add_u32 v20, v20, v5")
        a("v_and_b32 v21, 7, v20")
        a("v_mul_u32_u24 v20, 1280, v20")
        a("v_lshlrev_b32 v22, 3, v4")
        a("v_add_u32 v20, v20, v22")
        for t in range(8):
            a(f"v_xor_b32 v23, {t}, v21")
            a(f"v_lshlrev_b32 v23, 5, v23")
            a(f"v_add_u32 v{30+t}, v20, v23")
        a.wait_vm_all()
        a("s_barrier")
        for w in range(4):
            lab = a.newlabel("w640")
            if w < 3:
                a(f"s_cmp_lg_u32 s16, {w}")
                a(f"s_cbranch_scc1 {lab}")
            for i in range(10):
                T = 10 * w + i
                d = 40 + 4 * i
                a.lds(f"ds_read_b64_tr_b16 v[{d}:{d+1}], v{30 + (T & 7)} offset:{256*(T>>3)}")
                a.lds(f"ds_read_b64_tr_b16 v[{d+2}:{d+3}], v{30 + (T & 7)} offset:{256*(T>>3) + 20480}")
            a.wait_lg_all()
            for i in range(10):
                T = 10 * w + i
                ct, nt = divmod(T, 5)
                a(f"s_add_u32 s25, s24, {ct*ct_stride + nt*1024}")
                d = 40 + 4 * i
                a.vmem(f"buffer_store_dwordx4 v[{d}:{d+3}], v3, s[12:15], s25 offen")
            a("s_branch L_p0_end")
            if w < 3:
                a.label(lab)
        a.vm = []

    a.label("L_p0_wo")
    src_srd(16, 640 * 640 * 2)
    a("s_sub_u32 s17, s2, 306")
    a("s_cmp_lg_u32 s2, 325")
    a("s_cbranch_scc1 L_p0_noz")
    a("v_mov_b32 v40, 0\nv_mov_b32 v41, 0\nv_mov_b32 v42, 0\nv_mov_b32 v43, 0")
    a("v_lshlrev_b32 v44, 4, v0")
    for i in range(4):
        a(f"s_mov_b32 s25, {FLAGS + i*4096}")
        a(f"buffer_store_dwordx4 v[40:43], v44, s[12:15], s25 offen")
    a.label("L_p0_noz")
    a("s_mul_i32 s20, s17, 40960")
    a("s_mul_i32 s24, s17, 5120")
    a(f"s_add_u32 s24, s24, {WO}")
    w640_body(102400)

    a.label("L_p0_wd")
    src_srd(48, 1728 * 640 * 2)
    a("s_sub_u32 s17, s2, 252")
    a("s_mul_i32 s20, s17, 40960")
    a("s_cmp_ge_u32 s17, 27")
    a("s_cselect_b32 s26, 1, 0")
    a("s_mul_i32 s27, s26, 27")
    a("s_sub_u32 s27, s17, s27")
    a("s_mul_i32 s28, s27, 171")
    a("s_lshr_b32 s28, s28, 9")
    a("s_mul_i32 s29, s28, 3")
    a("s_sub_u32 s29, s27, s29")
    a("s_lshl_b32 s28, s28, 1")
    a("s_add_u32 s28, s28, s26")
    a("s_mul_i32 s28, s28, 3")
    a("s_add_u32 s28, s28, s29")
    a("s_mul_i32 s24, s28, 5120")
    a(f"s_add_u32 s24, s24, {WD}")
    for r in range(27): assert (r * 171) >> 9 == r // 3
    w640_body(276480)

    a.label("L_p0_wgu")
    a("s_cmp_ge_u32 s2, 54")
    a("s_cselect_b32 s17, 1, 0")
    a("s_mul_i32 s18, s17, 54")
    a("s_sub_u32 s18, s2, s18")
    a("s_lshr_b32 s19, s18, 1")
    a("s_and_b32 s18, s18, 1")
    a("s_lshl_b32 s26, s17, 3")
    a("s_add_u32 s26, s26, 32")
    a("s_load_dwordx2 s[6:7], s[0:1], s26")
    a("s_waitcnt lgkmcnt(0)")
    a("s_mov_b32 s8, s6"); a("s_mov_b32 s9, s7")
    a(f"s_mov_b32 s10, {640*1728*2}"); a("s_mov_b32 s11, 0x20000")
    ws_srd()
    a("v_lshrrev_b32 v20, 3, v2")
    a("v_and_b32 v21, 7, v2")
    a("v_bfe_u32 v22, v20, 1, 2")
    a("v_lshlrev_b32 v22, 1, v22")
    a("v_xor_b32 v21, v21, v22")
    a("v_lshlrev_b32 v21, 4, v21")
    a("v_mul_u32_u24 v20, 3456, v20")
    a("v_add_u32 v10, v20, v21")
    a(f"s_mul_i32 s20, s18, {320*3456}")
    a("s_lshl_b32 s21, s19, 7")
    a("s_add_u32 s20, s20, s21")
    a(f"s_mul_i32 s21, s16, {80*3456}")
    a("s_add_u32 s20, s20, s21")
    a("s_mul_i32 s23, s16, 10240")
    for i in range(10):
        a(f"s_add_u32 m0, s23, {i*1024}")
        if i > 0: a(f"s_add_u32 s20, s20, {8*3456}")
        else: a("s_nop 0")
        a.vmem(f"buffer_load_dwordx4 v10, s[8:11], s20 offen lds", "dma")
    a("v_lshlrev_b32 v20, 2, v6")
    a("v_add_u32 v20, v20, v5")
    a("v_bfe_u32 v21, v20, 1, 2")
    a("v_xor_b32 v21, s16, v21")
    a("v_lshlrev_b32 v21, 5, v21")
    a("v_lshlrev_b32 v20, 7, v20")
    a("v_add_u32 v20, v20, v21")
    a("v_lshlrev_b32 v22, 3, v4")
    a("v_add_u32 v30, v20, v22")
    a("s_lshl_b32 s24, s19, 2")
    a("s_add_u32 s24, s24, s16")
    a("s_mul_i32 s25, s24, 147")
    a("s_lshr_b32 s25, s25, 10")
    for T in range(112): assert (T * 147) >> 10 == T // 7
    a("s_mul_i32 s26, s25, 7")
    a("s_sub_u32 s26, s24, s26")
    a("s_mul_i32 s27, s25, 20")
    a("s_mul_i32 s28, s18, 10")
    a("s_add_u32 s27, s27, s28")
    a("s_mul_i32 s27, s27, 7")
    a("s_add_u32 s27, s27, s26")
    a("s_lshl_b32 s27, s27, 11")
    a("s_lshl_b32 s28, s17, 10")
    a("s_add_u32 s27, s27, s28")
    a(f"s_add_u32 s27, s27, {WG}")
    a("s_mul_i32 s28, s18, 112")
    a("s_add_u32 s28, s28, s24")
    a("s_lshl_b32 s28, s28, 1")
    a("s_add_u32 s28, s28, s17")
    a("s_lshl_b32 s28, s28, 6")
    a(f"s_add_u32 s28, s28, {CS2}")
    a("v_mov_b32 v80, 0x3f803f80\nv_mov_b32 v81, 0x3f803f80\nv_mov_b32 v82, 0x3f803f80\nv_mov_b32 v83, 0x3f803f80")
    a("v_mov_b32 v84, 0\nv_mov_b32 v85, 0\nv_mov_b32 v86, 0\nv_mov_b32 v87, 0")
    a.wait_vm_all()
    a("s_barrier")
    for k in range(10):
        d = 40 + 4 * k
        a.lds(f"ds_read_b64_tr_b16 v[{d}:{d+1}], v30 offset:{k*4096}")
        a.lds(f"ds_read_b64_tr_b16 v[{d+2}:{d+3}], v30 offset:{k*4096 + 2048}")
    a.wait_lg_all()
    for k in range(10):
        d = 40 + 4 * k
        a.vmem(f"buffer_store_dwordx4 v[{d}:{d+3}], v3, s[12:15], s27 offen")
        a(f"v_mfma_f32_16x16x32_bf16 v[84:87], v[{d}:{d+3}], v[80:83], v[84:87]")
        if k < 9: a("s_add_u32 s27, s27, 14336")
    a("s_nop 7\ns_nop 3")
    a("v_and_b32 v20, 15, v2")
    a("v_lshlrev_b32 v21, 4, v6")
    a("v_cmp_eq_u32 vcc, 0, v20")
    a("s_and_saveexec_b64 s[30:31], vcc")
    a("buffer_store_dwordx4 v[84:87], v21, s[12:15], s28 offen")
    a("s_mov_b64 exec, s[30:31]")
    a("s_branch L_p0_end")
    a.vm = []

    a.label("L_p0_wq")
    src_srd(8, 640 * 1920 * 2)
    a("s_sub_u32 s17, s2, 108")
    a("s_and_b32 s18, s17, 3")
    a("s_lshr_b32 s17, s17, 2")
    a("s_mul_i32 s19, s18, 320")
    a("s_and_b32 s26, s19, 0xffffff80")
    a("s_sub_u32 s19, s19, s26")
    for ph in range(3):
        a(f"v_add_u32 v20, {64*ph}, v2")
        a(f"v_mul_u32_u24 v21, 683, v20")
        a(f"v_lshrrev_b32 v21, 14, v21")
        a(f"v_mul_u32_u24 v22, 24, v21")
        a(f"v_sub_u32 v22, v20, v22")
        a(f"v_lshlrev_b32 v22, 4, v22")
        a(f"v_mul_u32_u24 v21, 3840, v21")
        a(f"v_add_u32 v{10+ph}, v21, v22")
    for c in range(192): assert (c * 683) >> 14 == c // 24
    a(f"s_mul_i32 s20, s17, {32*3840}")
    a("s_add_u32 s20, s20, s26")
    for w in range(4):
        lab = a.newlabel("wqld")
        if w < 3:
            a(f"s_cmp_lg_u32 s16, {w}")
            a(f"s_cbranch_scc1 {lab}")
        for mi in range(3):
            m = 3 * w + mi
            typ, r0 = m // 4, 8 * (m % 4)
            a(f"s_add_u32 s22, s20, {r0*3840 + typ*1280}")
            for ph in range(3):
                a(f"s_mov_b32 m0, {(m*3+ph)*1024}")
                a("s_nop 0")
                a(f"buffer_load_dwordx4 v{10+ph}, s[8:11], s22 offen lds")
        a("s_branch L_p0_wq_ld")
        if w < 3: a.label(lab)
    a.label("L_p0_wq_ld")
    a("v_lshlrev_b32 v20, 2, v6")
    a("v_add_u32 v20, v20, v5")
    a("v_mul_u32_u24 v20, 384, v20")
    a("s_mul_i32 s21, s16, 80")
    a("s_add_u32 s21, s21, s19")
    a("v_add_u32 v20, s21, v20")
    for wt in range(8):
        a(f"v_add_u32 v21, {4*wt}, v4")
        a(f"v_min_u32 v21, 29, v21")
        a(f"v_mul_u32_u24 v22, 52, v21")
        a(f"v_lshrrev_b32 v22, 8, v22")
        a(f"v_mul_u32_u24 v23, 5, v22")
        a(f"v_sub_u32 v23, v21, v23")
        a(f"v_cmp_le_u32 vcc, 3, v22")
        a(f"v_lshlrev_b32 v23, 3, v23")
        a(f"v_cndmask_b32 v24, 0, 1, vcc")
        a(f"v_mul_u32_u24 v25, 3, v24")
        a(f"v_sub_u32 v25, v22, v25")
        a(f"v_mul_u32_u24 v25, 12288, v25")
        a(f"v_mul_u32_u24 v24, 40, v24")
        a(f"v_add3_u32 v23, v23, v24, v25")
        a(f"v_add_u32 v{30+wt}, v20, v23")
    a("s_lshl_b32 s24, s18, 2")
    a("s_add_u32 s24, s24, s16")
    a("s_mul_i32 s24, s24, 163840")
    a("s_lshl_b32 s25, s17, 11")
    a("s_add_u32 s24, s24, s25")
    a(f"s_add_u32 s24, s24, {WQ}")
    a("s_waitcnt vmcnt(0)")
    a("s_barrier")
    for wt in range(8):
        d = 40 + 4 * wt
        a.lds(f"ds_read_b64_tr_b16 v[{d}:{d+1}], v{30+wt}")
        a.lds(f"ds_read_b64_tr_b16 v[{d+2}:{d+3}], v{30+wt} offset:{16*384}")
    a.wait_lg_all()
    for wt in range(8):
        w, t = wt >> 1, wt & 1
        d = 40 + 4 * wt
        a(f"s_add_u32 s25, s24, {w*40960 + t*1024}")
        a(f"buffer_store_dwordx4 v[{d}:{d+3}], v3, s[12:15], s25 offen")
    a("s_branch L_p0_end")

    a.label("L_p0_x")
    src_srd(0, 2048 * 640 * 2)
    a("s_sub_u32 s17, s2, 188")
    a("s_mul_i32 s20, s17, 40960")
    load_rows1280('x')
    a("v_and_b32 v20, 15, v2")
    a("v_mul_u32_u24 v21, 1280, v20")
    a("v_and_b32 v22, 1, v6")
    a("v_lshlrev_b32 v22, 3, v22")
    a("v_add_u32 v21, v21, v22")
    a("s_lshr_b32 s21, s16, 1")
    a("s_mul_i32 s21, s21, 20480")
    a("v_add_u32 v21, s21, v21")
    a("v_lshrrev_b32 v22, 1, v6")
    for kk in range(4):
        for wh in range(2):
            a(f"v_add_u32 v23, {4*kk+2*wh}, v22")
            a(f"v_xor_b32 v23, v23, v20")
            a(f"v_lshlrev_b32 v23, 4, v23")
            a(f"v_add_u32 v{30+kk*2+wh}, v21, v23")
    a("s_lshl_b32 s24, s17, 1")
    a("s_lshr_b32 s25, s16, 1")
    a("s_add_u32 s24, s24, s25")
    a("s_lshr_b32 s25, s24, 3")
    a("s_mul_i32 s25, s25, 163840")
    a("s_and_b32 s26, s24, 7")
    a("s_lshl_b32 s26, s26, 10")
    a("s_add_u32 s25, s25, s26")
    a("s_and_b32 s26, s16, 1")
    a("s_mul_i32 s27, s26, 81920")
    a("s_add_u32 s25, s25, s27")
    a(f"s_add_u32 s25, s25, {X0}")
    a("s_lshl_b32 s28, s24, 10")
    a("s_lshl_b32 s27, s26, 3")
    a("s_add_u32 s28, s28, s27")
    a(f"s_add_u32 s28, s28, {ST0}")
    a("v_mov_b32 v84, 0\nv_mov_b32 v85, 0")
    a("v_mov_b32 v80, 0x3f803f80")
    a.wait_vm_all()
    a("s_barrier")
    for half in range(2):
        lab = a.newlabel("xh")
        if half == 0:
            a("s_cmp_lg_u32 s26, 0")
            a(f"s_cbranch_scc1 {lab}")
        for i in range(10):
            ks = 10 * half + i
            aa, kk = ks >> 2, ks & 3
            d = 40 + 4 * i
            a.lds(f"ds_read_b64 v[{d}:{d+1}], v{30+kk*2} offset:{aa*256}")
            a.lds(f"ds_read_b64 v[{d+2}:{d+3}], v{30+kk*2+1} offset:{aa*256}")
        a("s_branch L_p0_x_rd")
        if half == 0: a.label(lab)
    a.label("L_p0_x_rd")
    a.wait_lg_all()
    for i in range(10):
        d = 40 + 4 * i
        a(f"buffer_store_dwordx4 v[{d}:{d+3}], v3, s[12:15], s25 offen")
        if i < 9: a("s_add_u32 s25, s25, 8192")
        for j in range(4):
            a(f"v_dot2_f32_bf16 v84, v{d+j}, v80, v84")
            a(f"v_dot2_f32_bf16 v85, v{d+j}, v{d+j}, v85")
    for reg in (84, 85):
        a(f"s_nop 2")
        a(f"v_mov_b32 v86, v{reg}")
        a("s_nop 1")
        a(f"v_permlane16_swap_b32 v{reg}, v86")
        a("s_nop 1")
        a(f"v_add_f32 v{reg}, v{reg}, v86")
        a(f"v_mov_b32 v86, v{reg}")
        a("s_nop 1")
        a(f"v_permlane32_swap_b32 v{reg}, v86")
        a("s_nop 1")
        a(f"v_add_f32 v{reg}, v{reg}, v86")
    a("v_cmp_eq_u32 vcc, 0, v6")
    a("s_nop 1")
    a("v_cndmask_b32 v84, 0, v84, vcc")
    a("v_cndmask_b32 v85, 0, v85, vcc")
    a("buffer_store_dwordx2 v[84:85], v3, s[12:15], s28 offen")
    a.label("L_p0_end")
    a("s_endpgm")
    desc = f""".section .rodata,"a"
.p2align 6
.amdhsa_kernel {name}
  .amdhsa_next_free_vgpr 96
  .amdhsa_next_free_sgpr 48
  .amdhsa_accum_offset 96
  .amdhsa_group_segment_fixed_size 0
  .amdhsa_kernarg_size 80
  .amdhsa_user_sgpr_count 2
  .amdhsa_user_sgpr_kernarg_segment_ptr 1
  .amdhsa_system_sgpr_workgroup_id_x 1
.end_amdhsa_kernel
.text
"""
    return a.text() + "\n" + desc

if __name__ == "__main__":
    print(gen_p0())
```

```python
from asmlib import *
from layout import *

S_WS = 4
S_OUT = 6
SRD = "s[8:11]"
SRD_O = "s[12:15]"
S_WAVE, S_TEAM, S_MEM = 16, 17, 18
S_XIN, S_STIN, S_HALO, S_HSTR, S_HST = 20, 21, 22, 23, 24
S_O, S_X1, S_ST1, S_H, S_XO, S_STO = 25, 26, 27, 28, 29, 30
S_LAYER = 31
V_TID, V_L16, V_LANE, V_TOK, V_G = 0, 1, 2, 3, 4

ONES = 0x3f803f80

def prologue(a, role_from_wg=True):
    a("s_load_dwordx2 s[4:5], s[0:1], 72")
    a("s_load_dwordx2 s[6:7], s[0:1], 56")
    a("v_lshrrev_b32 v5, 6, v0")
    a("v_and_b32 v2, 63, v0")
    a("v_lshlrev_b32 v1, 4, v2")
    a("v_readfirstlane_b32 s16, v5")
    a("v_and_b32 v3, 15, v2")
    a("v_lshrrev_b32 v4, 4, v2")
    if role_from_wg:
        a("s_lshr_b32 s17, s2, 4")
        a("s_and_b32 s18, s2, 15")
    a("s_waitcnt lgkmcnt(0)")
    a("s_mov_b32 s8, s4"); a("s_mov_b32 s9, s5"); a(f"s_mov_b32 s10, {WS_USED}"); a("s_mov_b32 s11, 0x20000")
    a("s_mov_b32 s12, s6"); a("s_mov_b32 s13, s7"); a(f"s_mov_b32 s14, {2048*640*2}"); a("s_mov_b32 s15, 0x20000")

def set_layer(a, layer):
    t = S_TEAM
    a(f"s_mul_i32 s32, s{t}, 163840")
    a(f"s_lshl_b32 s33, s{t}, 13")
    a(f"s_mul_i32 s34, s{t}, 442368")
    xin = X0 if layer == 0 else X2
    stin = ST0 if layer == 0 else ST2
    a(f"s_add_u32 s{S_XIN}, s32, {xin}")
    a(f"s_add_u32 s{S_STIN}, s33, {stin}")
    a(f"s_add_u32 s{S_O}, s32, {O_[layer]}")
    a(f"s_add_u32 s{S_X1}, s32, {X1[layer]}")
    a(f"s_add_u32 s{S_ST1}, s33, {ST1[layer]}")
    a(f"s_add_u32 s{S_H}, s34, {H_[layer]}")
    a(f"s_add_u32 s{S_XO}, s32, {X2}")
    a(f"s_add_u32 s{S_STO}, s33, {ST2}")
    a(f"s_mov_b32 s{S_LAYER}, {layer}")
    a(f"s_max_u32 s35, s{t}, 1")
    a(f"s_sub_u32 s35, s35, 1")
    if layer == 0:
        a(f"s_mul_i32 s36, s35, 163840")
        a(f"s_add_u32 s{S_HALO}, s36, {X0 + 7*1024}")
        a(f"s_mov_b32 s{S_HSTR}, 8192")
        a(f"s_lshl_b32 s36, s35, 13")
        a(f"s_add_u32 s{S_HST}, s36, {ST0 + 7*1024}")
    else:
        a(f"s_mul_i32 s36, s35, 20480")
        a(f"s_add_u32 s{S_HALO}, s36, {HALO2}")
        a(f"s_mov_b32 s{S_HSTR}, 1024")
        a(f"s_lshl_b32 s36, s35, 10")
        a(f"s_add_u32 s{S_HST}, s36, {HST2}")

def xreduce_g(a, regs, tmp):
    for r, t in zip(regs, tmp): a(f"v_mov_b32 v{t}, v{r}")
    a("s_nop 1")
    for r, t in zip(regs, tmp): a(f"v_permlane16_swap_b32 v{r}, v{t}")
    a("s_nop 1")
    for r, t in zip(regs, tmp): a(f"v_add_f32 v{r}, v{r}, v{t}")
    for r, t in zip(regs, tmp): a(f"v_mov_b32 v{t}, v{r}")
    a("s_nop 1")
    for r, t in zip(regs, tmp): a(f"v_permlane32_swap_b32 v{r}, v{t}")
    a("s_nop 1")
    for r, t in zip(regs, tmp): a(f"v_add_f32 v{r}, v{r}, v{t}")

def stats_finish(a, src, dst, tmp):
    a(f"v_add_f32 v{dst}, v{src}, v{src+2}")
    a(f"v_add_f32 v{dst+1}, v{src+1}, v{src+3}")
    xreduce_g(a, [dst, dst + 1], [tmp, tmp + 1])
    a(f"v_mul_f32 v{dst}, {1.0/640.0!r}, v{dst}")
    a(f"v_mul_f32 v{dst+1}, {1.0/640.0!r}, v{dst+1}")
    a(f"v_fma_f32 v{dst+1}, -v{dst}, v{dst}, v{dst+1}")
    a(f"v_max_f32 v{dst+1}, 0, v{dst+1}")
    a(f"v_add_f32 v{dst+1}, 0x3727c5ac, v{dst+1}")
    a(f"v_rsq_f32 v{dst+1}, v{dst+1}")
    a("s_nop 0")

MF = "v_mfma_f32_16x16x32_bf16"

def stream_loop(a, nfrag, read_fn, mfma_fn, slot_base, PD=5, pre_hook=None):
    NS = PD + 1
    def rd(f):
        if pre_hook: pre_hook(f)
        read_fn(f, slot_base + 4 * (f % NS))
    for f in range(min(PD, nfrag)): rd(f)
    for f in range(nfrag):
        if f + PD < nfrag: rd(f + PD)
        a.wait_lg(("fr", f))
        mfma_fn(f, slot_base + 4 * (f % NS))

G1_HALO, G1_RING, G1_STATS = 0, 20480, 151552
QKV_STRIDE = 304
def gen_g1(a):
    ACC = 32
    SLOT = 104
    def acc(j, t): return ACC + (j * 2 + t) * 4
    def wreg(ks, t): return (ks * 2 + t) * 4
    a.c("---- G1 prologue")
    a(f"s_lshl_b32 s32, s{S_MEM}, 2")
    a(f"s_add_u32 s32, s32, s{S_WAVE}")
    a(f"s_mul_i32 s32, s32, 40960")
    a(f"s_add_u32 s32, s32, {WQ}")
    a(f"s_lshl_b32 s33, s{S_WAVE}, 10")
    a(f"s_add_u32 s33, s33, s{S_STIN}")
    a.vmem(f"buffer_load_dwordx4 v[8:11], v1, {SRD}, s33 offen sc1", "st")
    a(f"s_add_u32 s33, s33, 4096")
    a.vmem(f"buffer_load_dwordx4 v[12:15], v1, {SRD}, s33 offen sc1", "st")
    a(f"s_lshl_b32 s34, s{S_WAVE}, 13")
    a(f"s_add_u32 s35, s34, s{S_XIN}")
    a(f"s_add_u32 s34, s34, {G1_RING}")
    def dma_stage(s):
        slot = s % 4
        for hf in range(2):
            a(f"s_add_u32 m0, s34, {slot*32768 + hf*4096}")
            a(f"s_add_u32 s36, s35, {s*32768 + hf*4096}")
            for i in range(4):
                a.vmem(f"buffer_load_dwordx4 v1, {SRD}, s36 offen offset:{i*1024} sc1 lds", ("x", s))
    def wload(ks0):
        for kp in range(2):
            a(f"s_add_u32 s37, s32, {(ks0 + 2*kp)*2048}")
            for i in range(4):
                ks = ks0 + 2 * kp + (i >> 1); t = i & 1
                r = wreg(ks, t)
                a.vmem(f"buffer_load_dwordx4 a[{r}:{r+3}], v1, {SRD}, s37 offen offset:{i*1024}", ("w", ks // 4))
    for s in range(4):
        wload(4 * s); dma_stage(s)
    wload(16)
    a(f"v_lshrrev_b32 v5, 2, v0")
    a(f"v_lshlrev_b32 v5, 10, v5")
    a(f"v_and_b32 v6, 3, v0")
    a(f"v_lshlrev_b32 v6, 8, v6")
    a(f"v_add_u32 v5, v5, v6")
    for i in range(4): a(f"v_mov_b32 v{16+i}, {hex(ONES)}")
    a(f"v_cmp_gt_u32 vcc, 80, v0")
    a(f"s_and_saveexec_b64 s[38:39], vcc")
    lab = a.newlabel("g1ones")
    a(f"s_cbranch_execz {lab}")
    a(f"ds_write_b128 v5, v[16:19] offset:{G1_HALO}")
    a.label(lab)
    a(f"s_mov_b64 exec, s[38:39]")
    a(f"s_mul_i32 s36, s{S_WAVE}, 5")
    a(f"s_mul_i32 s37, s36, s{S_HSTR}")
    a(f"s_add_u32 s37, s37, s{S_HALO}")
    a(f"s_lshl_b32 s36, s36, 10")
    a(f"v_cmp_ne_u32 vcc, 0, v3")
    a(f"s_and_saveexec_b64 s[38:39], vcc")
    for i in range(5):
        a(f"s_add_u32 m0, s36, {G1_HALO + i*1024}")
        if i: a(f"s_add_u32 s37, s37, s{S_HSTR}")
        else: a("s_nop 0")
        a.vmem(f"buffer_load_dwordx4 v1, {SRD}, s37 offen sc1 lds", "halo")
    a(f"s_mov_b64 exec, s[38:39]")
    a.vmem(f"buffer_load_dwordx4 v[20:23], v1, {SRD}, s{S_HST} offen sc1", "hst")
    for r in range(ACC, ACC + 72): a(f"v_mov_b32 v{r}, 0")
    a(f"v_add_u32 v5, {G1_RING}, v1")
    a(f"v_add_u32 v6, {G1_RING + 65536}, v1")
    a.wait_vm("st")
    stats_finish(a, 8, 24, 28)
    stats_finish(a, 12, 26, 28)
    a(f"s_lshl_b32 s36, s{S_WAVE}, 7")
    a(f"s_add_u32 s36, s36, {G1_STATS + 128}")
    a(f"v_lshlrev_b32 v7, 3, v3")
    a(f"v_add_u32 v7, s36, v7")
    a(f"v_cmp_eq_u32 vcc, 0, v4")
    a(f"s_and_saveexec_b64 s[38:39], vcc")
    a(f"ds_write_b64 v7, v[24:25]")
    a(f"ds_write_b64 v7, v[26:27] offset:512")
    a(f"s_mov_b64 exec, s[38:39]")
    a("s_waitcnt lgkmcnt(0)")
    a.lg = []
    def read_fn(f, sl):
        if f < 160:
            ks, tt = divmod(f, 8); s, j = divmod(ks, 4); slot = s % 4
            off = slot * 32768 + (j * 8 + tt) * 1024
            base = "v5" if off < 65536 else "v6"
            a.lds(f"ds_read_b128 v[{sl}:{sl+3}], {base} offset:{off % 65536}", ("fr", f))
        else:
            ks = f - 160
            a.lds(f"ds_read_b128 v[{sl}:{sl+3}], v1 offset:{G1_HALO + ks*1024}", ("fr", f))
    def mfma_fn(f, sl):
        if f < 160: ks, tt = divmod(f, 8); j = tt + 1
        else: ks, j = f - 160, 0
        for t in range(2):
            w = wreg(ks, t); d = acc(j, t)
            a(f"{MF} v[{d}:{d+3}], a[{w}:{w+3}], v[{sl}:{sl+3}], v[{d}:{d+3}]")
    def pre_hook(f):
        if f < 160 and f % 32 == 0:
            s = f // 32
            tags = [("x", s), ("w", s)]
            live = [t for t in tags if a.has_vm(t)]
            if live: a.wait_vm(live)
            a("s_barrier")
            if s == 2: dma_stage(4)
        if f == 160:
            if a.has_vm("halo") or a.has_vm("hst"): a.wait_vm([t for t in ("halo", "hst") if a.has_vm(t)])
            a("s_barrier")
    stream_loop(a, 180, read_fn, mfma_fn, SLOT, PD=5, pre_hook=pre_hook)
    a.c("---- G1 epilogue")
    stats_finish(a, 20, 24, 28)
    a(f"v_lshlrev_b32 v7, 3, v3")
    a(f"v_add_u32 v7, {G1_STATS}, v7")
    a(f"v_cmp_eq_u32 vcc, 0, v4")
    a(f"s_and_saveexec_b64 s[38:39], vcc")
    a(f"ds_write_b64 v7, v[24:25]")
    a(f"s_mov_b64 exec, s[38:39]")
    a("s_waitcnt lgkmcnt(0)")
    a("s_barrier")
    ST = 104
    for j in range(9):
        a.lds(f"ds_read_b64 v[{ST+2*j}:{ST+2*j+1}], v7 offset:{j*128}", "stv")
    CS = 124
    for t in range(2):
        for r in range(4):
            a(f"v_mov_b32_dpp v{CS+4*t+r}, v{acc(0,t)+r} row_newbcast:0 row_mask:0xf bank_mask:0xf")
    for t in range(2):
        a(f"s_lshl_b32 s36, s{S_WAVE}, 3")
        a(f"s_add_u32 s36, s36, {4*t}")
        a(f"v_add_u32 v8, s36, v4")
        a(f"v_mul_u32_u24 v9, 52, v8")
        a(f"v_lshrrev_b32 v9, 8, v9")
        a(f"v_mul_u32_u24 v10, 5, v9")
        a(f"v_sub_u32 v10, v8, v10")
        a(f"v_mul_u32_u24 v9, 48, v9")
        a(f"v_lshlrev_b32 v10, 3, v10")
        a(f"v_add_u32 v9, v9, v10")
        a(f"v_mul_u32_u24 v10, {QKV_STRIDE}, v3")
        a(f"v_add_u32 v{12+t}, v9, v10")
    for G in range(32): assert (G * 52) >> 8 == G // 5
    a.wait_lg_all()
    TMP = 132
    for j in range(9):
        for t in range(2):
            d = acc(j, t); m = ST + 2 * j; tp = TMP + ((j * 2 + t) % 4) * 6
            for h in range(2):
                a(f"v_pk_fma_f32 v[{d+2*h}:{d+2*h+1}], v[{CS+4*t+2*h}:{CS+4*t+2*h+1}], v[{m}:{m+1}], v[{d+2*h}:{d+2*h+1}] op_sel_hi:[1,0,1] neg_lo:[0,1,0] neg_hi:[0,1,0]")
            for h in range(2):
                a(f"v_pk_mul_f32 v[{d+2*h}:{d+2*h+1}], v[{d+2*h}:{d+2*h+1}], v[{m}:{m+1}] op_sel:[0,1] op_sel_hi:[1,1]")
            a(f"v_cvt_pk_bf16_f32 v{tp}, v{d}, v{d+1}")
            a(f"v_cvt_pk_bf16_f32 v{tp+1}, v{d+2}, v{d+3}")
            a.lds(f"ds_write_b64 v{12+t}, v[{tp}:{tp+1}] offset:{j*16*QKV_STRIDE}", "qw")
    a.wait_lg_all()
    a("s_barrier")
    a(f"s_and_b32 s36, s{S_WAVE}, 1")
    a(f"s_lshr_b32 s37, s{S_WAVE}, 1")
    a(f"s_lshl_b32 s40, s36, 6")
    a(f"v_add_u32 v8, s40, v2")
    a(f"v_add_u32 v9, 2, v8")
    a(f"v_mul_u32_u24 v9, {QKV_STRIDE}, v9")
    a(f"s_mul_i32 s41, s37, 144")
    a(f"v_add_u32 v9, s41, v9")
    a(f"s_lshl_b32 s41, s{S_TEAM}, 7")
    a(f"v_add_u32 v10, s41, v8")
    Q, KK, VV = 192, 32, 112
    def rd40(dst, off, tag):
        a.lds(f"ds_read_b128 v[{dst}:{dst+3}], v9 offset:{off}", tag)
        a.lds(f"ds_read_b128 v[{dst+4}:{dst+7}], v9 offset:{off+16}", tag)
        a.lds(f"ds_read_b64 v[{dst+8}:{dst+9}], v9 offset:{off+32}", tag)
    rd40(Q, 14 * QKV_STRIDE, "q")
    for m in range(4): rd40(KK + 10 * m, (14 - 2 * m) * QKV_STRIDE + 48, ("k", m))
    LG = 204
    def logit(m):
        a(f"v_dot2_f32_bf16 v{LG+m}, v{Q}, v{KK+10*m}, 0")
        for c in range(1, 10):
            a(f"v_dot2_f32_bf16 v{LG+m}, v{Q+c}, v{KK+10*m+c}, v{LG+m}")
    for m in range(8):
        a.wait_lg([("k", m)])
        if m + 4 < 8: rd40(KK + 10 * (m + 4), (14 - 2 * (m + 4)) * QKV_STRIDE + 48, ("k", m + 4))
        logit(m)
    for m in range(4): rd40(VV + 10 * m, (14 - 2 * m) * QKV_STRIDE + 96, ("v", m))
    a("s_nop 2")
    a(f"v_mov_b32 v11, 0xf149f2ca")
    for m in range(1, 8):
        a(f"v_cmp_le_u32 vcc, {2*m}, v10")
        a("s_nop 1")
        a(f"v_cndmask_b32 v{LG+m}, v11, v{LG+m}, vcc")
    a(f"v_max3_f32 v12, v{LG}, v{LG+1}, v{LG+2}")
    a(f"v_max3_f32 v12, v12, v{LG+3}, v{LG+4}")
    a(f"v_max3_f32 v12, v12, v{LG+5}, v{LG+6}")
    a(f"v_max_f32 v12, v12, v{LG+7}")
    import math
    cexp = (20 ** -0.5) * math.log2(math.e)
    a(f"v_mov_b32 v13, {cexp!r}")
    a(f"v_mul_f32 v12, v12, v13")
    for m in range(8): a(f"v_fma_f32 v{LG+m}, v{LG+m}, v13, -v12")
    for m in range(8): a(f"v_exp_f32 v{LG+m}, v{LG+m}")
    a("s_nop 0")
    a(f"v_add_f32 v12, v{LG}, v{LG+1}")
    for m in range(2, 8): a(f"v_add_f32 v12, v12, v{LG+m}")
    a(f"v_rcp_f32 v12, v12")
    a("s_nop 0")
    for m in range(8): a(f"v_mul_f32 v{LG+m}, v{LG+m}, v12")
    P = 212
    for h in range(4): a(f"v_cvt_pk_bf16_f32 v{P+h}, v{LG+2*h}, v{LG+2*h+1}")
    for m in range(4, 8): rd40(VV + 10 * m, (14 - 2 * m) * QKV_STRIDE + 96, ("v", m))
    a(f"s_mov_b32 s42, 0x05040100")
    a(f"s_mov_b32 s43, 0x07060302")
    OO = 32
    for h in range(4):
        a.wait_lg([("v", 2 * h + 1)])
        for c in range(10):
            v0_, v1_ = VV + 20 * h + c, VV + 20 * h + 10 + c
            tl, th = 216 + 2 * (c % 4), 217 + 2 * (c % 4)
            a(f"v_perm_b32 v{tl}, v{v1_}, v{v0_}, s42")
            a(f"v_perm_b32 v{th}, v{v1_}, v{v0_}, s43")
            c0 = "0" if h == 0 else f"v{OO+2*c}"
            c1 = "0" if h == 0 else f"v{OO+2*c+1}"
            a(f"v_dot2_f32_bf16 v{OO+2*c}, v{P+h}, v{tl}, {c0}")
            a(f"v_dot2_f32_bf16 v{OO+2*c+1}, v{P+h}, v{th}, {c1}")
    a("s_nop 2")
    OP = 56
    for c in range(10): a(f"v_cvt_pk_bf16_f32 v{OP+c}, v{OO+2*c}, v{OO+2*c+1}")
    a(f"s_lshl_b32 s36, s36, 12")
    a(f"v_lshlrev_b32 v14, 10, v4")
    a(f"v_lshlrev_b32 v15, 4, v3")
    a(f"v_add3_u32 v14, v14, v15, s36")
    a(f"s_mul_i32 s40, s{S_MEM}, 10")
    a(f"s_mul_i32 s41, s37, 5")
    a(f"s_add_u32 s40, s40, s41")
    for p in range(5):
        a(f"s_add_u32 s41, s40, {p}")
        a(f"s_lshr_b32 s44, s41, 3")
        a(f"s_lshl_b32 s44, s44, 13")
        a(f"s_and_b32 s45, s41, 3")
        a(f"s_lshl_b32 s45, s45, 8")
        a(f"s_add_u32 s44, s44, s45")
        a(f"s_bfe_u32 s45, s41, 0x10002")
        a(f"s_lshl_b32 s45, s45, 3")
        a(f"s_add_u32 s44, s44, s45")
        a(f"s_add_u32 s44, s44, s{S_O}")
        a.vmem(f"buffer_store_dwordx2 v[{OP+2*p}:{OP+2*p+1}], v14, {SRD}, s44 offen", "ost")

def gen_gdown(a, which, final=None):
    KSH = 10 if which == 2 else 27
    ACT = S_O if which == 2 else S_H
    ACC = 32; SLOT = 72
    def acc(j, nt): return ACC + (j * 5 + nt) * 4
    def areg(s, j): return (s * 2 + j) * 4
    XCH = 0 if which == 2 else 0
    WB = 49152 if which == 2 else 0
    a.c(f"---- G{which} prologue")
    a(f"s_lshr_b32 s32, s{S_WAVE}, 1")
    a(f"s_and_b32 s33, s{S_WAVE}, 1")
    a(f"s_lshr_b32 s34, s{S_MEM}, 3")
    a(f"s_and_b32 s35, s{S_MEM}, 7")
    a(f"s_lshl_b32 s36, s34, 2")
    a(f"s_lshl_b32 s37, s33, 1")
    a(f"s_add_u32 s36, s36, s37")
    if which == 2:
        a(f"s_mul_i32 s40, s35, 102400")
        a(f"s_mul_i32 s41, s{S_WAVE}, 25600")
        a(f"s_add_u32 s40, s40, s41")
        a(f"s_add_u32 s40, s40, {WO}")
        a(f"s_add_u32 s41, s41, {WB}")
        for i in range(25):
            if i % 4 == 0:
                a(f"s_add_u32 m0, s41, {i*1024}")
                a(f"s_add_u32 s42, s40, {i*1024}")
            a.vmem(f"buffer_load_dwordx4 v1, {SRD}, s42 offen offset:{(i%4)*1024} lds", ("w", 0))
    else:
        a(f"s_mul_i32 s40, s35, 276480")
        a(f"s_add_u32 s40, s40, {WD}")
        a(f"s_lshl_b32 s41, s{S_WAVE}, 3")
        a(f"s_cmp_eq_u32 s{S_WAVE}, 3")
        a(f"s_cselect_b32 s41, 23, s41")
        a(f"s_lshl_b32 s41, s41, 10")
        a(f"s_add_u32 s40, s40, s41")
        a(f"s_cmp_lt_u32 s{S_WAVE}, 2")
        a(f"s_cselect_b32 s43, 3, 2")
        a(f"s_lshl_b32 s43, s43, 10")
    def dma_stage(st):
        slot = st % 5
        a(f"s_add_u32 m0, s41, {slot*30720}")
        a(f"s_add_u32 s42, s40, {st*30720}")
        for i in range(4):
            a.vmem(f"buffer_load_dwordx4 v1, {SRD}, s42 offen offset:{i*1024} lds", ("w", st))
        a(f"s_add_u32 m0, s41, {slot*30720 + 4096}")
        a(f"s_add_u32 s42, s40, {st*30720 + 4096}")
        for i in range(3):
            a.vmem(f"buffer_load_dwordx4 v1, {SRD}, s42 offen offset:{i*1024} lds", ("w", st))
        a(f"s_add_u32 m0, m0, s43")
        a(f"s_add_u32 s42, s42, s43")
        a.vmem(f"buffer_load_dwordx4 v1, {SRD}, s42 offen lds", ("w", st))
    if which == 4:
        for st in range(5): dma_stage(st)
    a(f"s_mul_i32 s44, s32, {KSH*8192}")
    a(f"s_lshl_b32 s45, s36, 10")
    a(f"s_add_u32 s44, s44, s45")
    a(f"s_add_u32 s44, s44, s{ACT}")
    for s in range(KSH):
        for j in range(2):
            r = areg(s, j)
            a.vmem(f"buffer_load_dwordx4 a[{r}:{r+3}], v1, {SRD}, s44 offen offset:{j*1024} sc1", ("a", s))
        if s < KSH - 1: a(f"s_add_u32 s44, s44, 8192")
    RES = 100
    a(f"s_add_u32 s46, s36, s32")
    a(f"s_mul_i32 s47, s35, 5")
    def piece_off(dst, nt, base_sreg):
        a(f"s_add_u32 s50, s47, {nt}")
        a(f"s_lshr_b32 s51, s50, 1")
        a(f"s_lshl_b32 s51, s51, 13")
        a(f"s_and_b32 s50, s50, 1")
        a(f"s_lshl_b32 s50, s50, 3")
        a(f"s_add_u32 s51, s51, s50")
        a(f"s_lshl_b32 s50, s46, 10")
        a(f"s_add_u32 s51, s51, s50")
        a(f"s_add_u32 s{dst}, s51, s{base_sreg}")
    resbase = S_XIN if which == 2 else S_X1
    for nt in range(5):
        piece_off(52, nt, resbase)
        a.vmem(f"buffer_load_dwordx2 v[{RES+2*nt}:{RES+2*nt+1}], v1, {SRD}, s52 offen sc1", "res")
    for r in range(ACC, ACC + 40): a(f"v_mov_b32 v{r}, 0")
    if which == 2:
        a(f"s_mul_i32 s48, s32, 51200")
        a(f"s_add_u32 s48, s48, {WB}")
        a(f"v_add_u32 v5, s48, v1")
    else:
        a(f"s_mul_i32 s48, s32, 15360")
        a(f"v_add_u32 v5, s48, v1")
        a(f"v_add_u32 v6, 61440, v5")
        a(f"v_add_u32 v7, 122880, v5")
    nfr = KSH * 5
    def read_fn(f, sl):
        s, nt = divmod(f, 5)
        if which == 2:
            a.lds(f"ds_read_b128 v[{sl}:{sl+3}], v5 offset:{(s*5+nt)*1024}", ("fr", f))
        else:
            st, s3 = divmod(s, 3); slot = st % 5
            base = ["v5", "v5", "v6", "v6", "v7"][slot]
            a.lds(f"ds_read_b128 v[{sl}:{sl+3}], {base} offset:{(slot%2)*30720 + (s3*5+nt)*1024}", ("fr", f))
    def mfma_fn(f, sl):
        s, nt = divmod(f, 5)
        if nt == 0 and a.has_vm(("a", s)): a.wait_vm(("a", s))
        for j in range(2):
            d = acc(j, nt); r = areg(s, j)
            a(f"{MF} v[{d}:{d+3}], v[{sl}:{sl+3}], a[{r}:{r+3}], v[{d}:{d+3}]")
    def pre_hook(f):
        if which == 2:
            if f == 0:
                a.wait_vm(("w", 0)); a("s_barrier")
        else:
            if f % 15 == 0:
                st = f // 15
                if a.has_vm(("w", st)): a.wait_vm(("w", st))
                a("s_barrier")
                if st >= 2 and st + 3 < 9: dma_stage(st + 3)
    stream_loop(a, nfr, read_fn, mfma_fn, SLOT, PD=5, pre_hook=pre_hook)
    a.c(f"---- G{which} exchange + epilogue")
    a("s_barrier")
    a(f"s_mul_i32 s48, s{S_WAVE}, 5120")
    a(f"v_add_u32 v5, s48, v1")
    a(f"s_xor_b32 s49, s{S_WAVE}, 2")
    a(f"s_mul_i32 s49, s49, 5120")
    a(f"v_add_u32 v6, s49, v1")
    R = 72
    RCV = 112
    l1 = a.newlabel("kh1"); l2 = a.newlabel("khd")
    a("s_nop 7")
    a(f"s_cmp_lg_u32 s32, 0")
    a(f"s_cbranch_scc1 {l1}")
    for kh in range(2):
        if kh == 1: a.label(l1)
        for nt in range(5):
            d = acc(1 - kh, nt)
            a(f"ds_write_b128 v5, v[{d}:{d+3}] offset:{XCH + nt*1024}")
        a("s_waitcnt lgkmcnt(0)")
        a("s_barrier")
        for nt in range(5):
            a(f"ds_read_b128 v[{RCV+4*nt}:{RCV+4*nt+3}], v6 offset:{XCH + nt*1024}")
        a("s_waitcnt lgkmcnt(0)")
        for nt in range(5):
            d = acc(kh, nt)
            for h in range(2):
                a(f"v_pk_add_f32 v[{R+4*nt+2*h}:{R+4*nt+2*h+1}], v[{d+2*h}:{d+2*h+1}], v[{RCV+4*nt+2*h}:{RCV+4*nt+2*h+1}]")
        if kh == 0: a(f"s_branch {l2}")
    a.label(l2)
    a.lg = []
    if a.has_vm("res"): a.wait_vm("res")
    a(f"s_mov_b32 s53, 0x00003f80")
    a(f"s_mov_b32 s54, 0x3f800000")
    XP = 132
    for nt in range(5):
        for h in range(2):
            rr = RES + 2 * nt + h
            a(f"v_dot2_f32_bf16 v{R+4*nt+2*h}, v{rr}, s53, v{R+4*nt+2*h}")
            a(f"v_dot2_f32_bf16 v{R+4*nt+2*h+1}, v{rr}, s54, v{R+4*nt+2*h+1}")
    a("s_nop 2")
    for nt in range(5):
        for h in range(2):
            a(f"v_cvt_pk_bf16_f32 v{XP+2*nt+h}, v{R+4*nt+2*h}, v{R+4*nt+2*h+1}")
    rowmajor = (which == 4 and final == 'rowmajor')
    if not rowmajor:
        outbase = S_X1 if which == 2 else S_XO
        for nt in range(5):
            piece_off(52, nt, outbase)
            a.vmem(f"buffer_store_dwordx2 v[{XP+2*nt}:{XP+2*nt+1}], v1, {SRD}, s52 offen", "xst")
        a(f"v_mov_b32 v8, {hex(ONES)}")
        a(f"v_dot2_f32_bf16 v10, v{XP}, v8, 0")
        a(f"v_dot2_f32_bf16 v11, v{XP}, v{XP}, 0")
        for i in range(1, 10):
            a(f"v_dot2_f32_bf16 v10, v{XP+i}, v8, v10")
            a(f"v_dot2_f32_bf16 v11, v{XP+i}, v{XP+i}, v11")
        a("s_nop 2")
        xreduce_g(a, [10, 11], [12, 13])
        stb = S_ST1 if which == 2 else S_STO
        a(f"s_lshl_b32 s50, s46, 10")
        a(f"s_lshr_b32 s51, s35, 1")
        a(f"s_lshl_b32 s51, s51, 8")
        a(f"s_add_u32 s50, s50, s51")
        a(f"s_and_b32 s51, s35, 1")
        a(f"s_lshl_b32 s51, s51, 3")
        a(f"s_add_u32 s50, s50, s51")
        a(f"s_add_u32 s50, s50, s{stb}")
        a(f"v_lshlrev_b32 v12, 4, v3")
        a(f"v_cmp_eq_u32 vcc, 0, v4")
        a(f"s_and_saveexec_b64 s[38:39], vcc")
        a.vmem(f"buffer_store_dwordx2 v[10:11], v12, {SRD}, s50 offen", "xst")
        a(f"s_mov_b64 exec, s[38:39]")
        if which == 4:
            lab = a.newlabel("nohalo")
            a(f"s_cmp_lg_u32 s46, 7")
            a(f"s_cbranch_scc1 {lab}")
            a(f"s_mul_i32 s55, s{S_TEAM}, 20480")
            a(f"s_add_u32 s55, s55, {HALO2}")
            for nt in range(5):
                a(f"s_add_u32 s50, s47, {nt}")
                a(f"s_lshr_b32 s51, s50, 1")
                a(f"s_lshl_b32 s51, s51, 10")
                a(f"s_and_b32 s50, s50, 1")
                a(f"s_lshl_b32 s50, s50, 3")
                a(f"s_add_u32 s51, s51, s50")
                a(f"s_add_u32 s51, s51, s55")
                a(f"buffer_store_dwordx2 v[{XP+2*nt}:{XP+2*nt+1}], v1, {SRD}, s51 offen sc1")
            a(f"s_lshl_b32 s55, s{S_TEAM}, 10")
            a(f"s_add_u32 s55, s55, {HST2}")
            a(f"s_lshr_b32 s51, s35, 1")
            a(f"s_lshl_b32 s51, s51, 8")
            a(f"s_add_u32 s55, s55, s51")
            a(f"s_and_b32 s51, s35, 1")
            a(f"s_lshl_b32 s51, s51, 3")
            a(f"s_add_u32 s55, s55, s51")
            a(f"s_and_saveexec_b64 s[38:39], vcc")
            a(f"buffer_store_dwordx2 v[10:11], v12, {SRD}, s55 offen sc1")
            a(f"s_mov_b64 exec, s[38:39]")
            a.label(lab)
    else:
        a(f"v_mul_u32_u24 v8, 1280, v3")
        a(f"v_lshlrev_b32 v9, 3, v4")
        a(f"v_add_u32 v8, v8, v9")
        a(f"s_lshl_b32 s50, s{S_TEAM}, 3")
        a(f"s_add_u32 s50, s50, s46")
        a(f"s_mul_i32 s50, s50, 20480")
        a(f"s_mul_i32 s51, s35, 160")
        a(f"s_add_u32 s50, s50, s51")
        for nt in range(5):
            a.vmem(f"buffer_store_dwordx2 v[{XP+2*nt}:{XP+2*nt+1}], v8, {SRD_O}, s50 offen offset:{nt*32}", "xst")

G3_RING = 20480
def gen_g3(a):
    ACC = 32; SLOT = 144
    def acc(p, gu, j): return ACC + ((p * 2 + gu) * 2 + j) * 4
    def areg(ks, j): return (ks * 2 + j) * 4
    a.c("---- G3 prologue")
    a(f"s_mul_i32 s40, s{S_MEM}, 286720")
    a(f"s_mul_i32 s41, s{S_WAVE}, 7168")
    a(f"s_add_u32 s40, s40, s41")
    a(f"s_add_u32 s40, s40, {WG}")
    a(f"s_add_u32 s41, s41, {G3_RING}")
    def dma_stage(s):
        slot = s % 5
        for hf in range(2):
            a(f"s_add_u32 m0, s41, {slot*28672 + hf*4096}")
            a(f"s_add_u32 s42, s40, {s*28672 + hf*4096}")
            for i in range(4 if hf == 0 else 3):
                a.vmem(f"buffer_load_dwordx4 v1, {SRD}, s42 offen offset:{i*1024} lds", ("w", s))
    CS = 144
    a(f"s_mul_i32 s43, s{S_MEM}, {7*2*64}")
    a(f"s_add_u32 s43, s43, {CS2}")
    a(f"v_lshlrev_b32 v5, 4, v4")
    for half in range(2):
        for i in range(14):
            r = CS + half * 56 + 4 * i
            a.vmem(f"buffer_load_dwordx4 v[{r}:{r+3}], v5, {SRD}, s43 offen offset:{i*64}", "cs")
        if half == 0: a(f"s_add_u32 s43, s43, {112*2*64}")
    a(f"s_lshl_b32 s44, s{S_WAVE}, 11")
    a(f"s_add_u32 s44, s44, s{S_ST1}")
    a.vmem(f"buffer_load_dwordx4 v[8:11], v1, {SRD}, s44 offen sc1", "st")
    a.vmem(f"buffer_load_dwordx4 v[12:15], v1, {SRD}, s44 offen offset:1024 sc1", "st")
    a(f"s_lshl_b32 s44, s{S_WAVE}, 11")
    a(f"s_add_u32 s44, s44, s{S_X1}")
    def aload(ks):
        a(f"s_add_u32 s45, s44, {ks*8192}")
        for j in range(2):
            r = areg(ks, j)
            a.vmem(f"buffer_load_dwordx4 a[{r}:{r+3}], v1, {SRD}, s45 offen offset:{j*1024} sc1", ("a", ks))
    for s in range(5):
        dma_stage(s); aload(2 * s); aload(2 * s + 1)
    a.wait_vm("st")
    stats_finish(a, 8, 24, 28)
    stats_finish(a, 12, 26, 28)
    for i in range(28):
        a(f"v_pk_add_f32 v[{CS+2*i}:{CS+2*i+1}], v[{CS+2*i}:{CS+2*i+1}], v[{CS+56+2*i}:{CS+56+2*i+1}]")
    for p in range(7):
        for gu in range(2):
            c = CS + (p * 2 + gu) * 4
            for j in range(2):
                d = acc(p, gu, j); m = 24 + 2 * j
                for h in range(2):
                    a(f"v_pk_mul_f32 v[{d+2*h}:{d+2*h+1}], v[{c+2*h}:{c+2*h+1}], v[{m}:{m+1}] op_sel_hi:[1,0] neg_lo:[0,1] neg_hi:[0,1]")
    for ks in range(10, 20): aload(ks)
    a(f"v_add_u32 v5, {G3_RING}, v1")
    a(f"v_add_u32 v6, {G3_RING + 57344}, v1")
    a(f"v_add_u32 v7, {G3_RING + 114688}, v1")
    def read_fn(f, sl):
        ks, idx = divmod(f, 14); s = ks // 2; slot = s % 5
        base = ["v5", "v5", "v6", "v6", "v7"][slot]
        a.lds(f"ds_read_b128 v[{sl}:{sl+3}], {base} offset:{(slot%2)*28672 + ((ks&1)*14 + idx)*1024}", ("fr", f))
    def mfma_fn(f, sl):
        ks, idx = divmod(f, 14); p, gu = idx >> 1, idx & 1
        if idx == 0 and a.has_vm(("a", ks)): a.wait_vm(("a", ks))
        for j in range(2):
            d = acc(p, gu, j); r = areg(ks, j)
            a(f"{MF} v[{d}:{d+3}], v[{sl}:{sl+3}], a[{r}:{r+3}], v[{d}:{d+3}]")
    def pre_hook(f):
        if f % 28 == 0:
            s = f // 28
            if a.has_vm(("w", s)): a.wait_vm(("w", s))
            a("s_barrier")
            if s >= 2 and s + 3 < 10: dma_stage(s + 3)
    stream_loop(a, 280, read_fn, mfma_fn, SLOT, PD=5, pre_hook=pre_hook)
    a.c("---- G3 epilogue (GEGLU)")
    import math
    c0 = -2.0 * math.sqrt(2.0 / math.pi) * math.log2(math.e)
    c1 = c0 * 0.044715
    a(f"v_mov_b32 v8, {c0!r}")
    a(f"v_mov_b32 v9, {c0!r}")
    a(f"v_mov_b32 v10, {c1!r}")
    a(f"v_mov_b32 v11, {c1!r}")
    for j in range(2):
        a(f"v_rcp_f32 v{16+2*j}, v{25+2*j}")
        a("s_nop 0")
        a(f"v_mov_b32 v{17+2*j}, v{16+2*j}")
    a(f"s_mul_i32 s46, s{S_MEM}, 7")
    a(f"s_lshl_b32 s47, s{S_WAVE}, 11")
    a(f"s_add_u32 s47, s47, s{S_H}")
    a("s_nop 7")
    T0 = 144
    for p in range(7):
        lab = a.newlabel("g3skip")
        a(f"s_add_u32 s48, s46, {p}")
        if p >= 3:
            a(f"s_cmp_ge_u32 s48, 108")
            a(f"s_cbranch_scc1 {lab}")
        a(f"s_lshr_b32 s49, s48, 1")
        a(f"s_lshl_b32 s49, s49, 13")
        a(f"s_and_b32 s50, s48, 1")
        a(f"s_lshl_b32 s50, s50, 3")
        a(f"s_add_u32 s49, s49, s50")
        a(f"s_add_u32 s49, s49, s47")
        for j in range(2):
            g = acc(p, 0, j); u = acc(p, 1, j); m = 24 + 2 * j; ir = 16 + 2 * j
            t = T0 + j * 16
            for h in range(2):
                gg = f"v[{g+2*h}:{g+2*h+1}]"; uu = f"v[{u+2*h}:{u+2*h+1}]"
                tt = f"v[{t+8*h}:{t+8*h+1}]"; pp = f"v[{t+8*h+2}:{t+8*h+3}]"; ee = t + 8 * h + 4
                a(f"v_pk_mul_f32 {gg}, {gg}, v[{m}:{m+1}] op_sel:[0,1] op_sel_hi:[1,1]")
                a(f"v_pk_mul_f32 {tt}, {gg}, {gg}")
                a(f"v_pk_fma_f32 {pp}, {tt}, v[10:11], v[8:9]")
                a(f"v_pk_mul_f32 {pp}, {pp}, {gg}")
                a(f"v_exp_f32 v{ee}, v{t+8*h+2}")
                a(f"v_exp_f32 v{ee+1}, v{t+8*h+3}")
                a(f"v_pk_mul_f32 {uu}, {uu}, {gg}")
                a(f"v_pk_fma_f32 v[{ee}:{ee+1}], v[{ee}:{ee+1}], v[{ir}:{ir+1}], v[{ir}:{ir+1}]")
                a(f"v_rcp_f32 v{ee}, v{ee}")
                a(f"v_rcp_f32 v{ee+1}, v{ee+1}")
                a("s_nop 0")
                a(f"v_pk_mul_f32 {uu}, {uu}, v[{ee}:{ee+1}]")
            a(f"v_cvt_pk_bf16_f32 v{t+6}, v{u}, v{u+1}")
            a(f"v_cvt_pk_bf16_f32 v{t+7}, v{u+2}, v{u+3}")
            a.vmem(f"buffer_store_dwordx2 v[{t+6}:{t+7}], v1, {SRD}, s49 offen offset:{j*1024}", "hst")
        a.label(lab)

def kernel_wrap(name, body_fn, nv=512, nacc=256, ns=64):
    a = Asm()
    a(f".globl {name}\n.p2align 8\n.type {name},@function\n{name}:")
    a("s_cmp_ge_u32 s2, 256")
    a(f"s_cbranch_scc1 L_end_{name}")
    body_fn(a)
    a("s_waitcnt vmcnt(0)")
    a.label(f"L_end_{name}")
    a("s_endpgm")
    desc = f""".section .rodata,"a"
.p2align 6
.amdhsa_kernel {name}
  .amdhsa_next_free_vgpr {nv}
  .amdhsa_next_free_sgpr {ns}
  .amdhsa_accum_offset {nacc}
  .amdhsa_group_segment_fixed_size 0
  .amdhsa_kernarg_size 80
  .amdhsa_user_sgpr_count 2
  .amdhsa_user_sgpr_kernarg_segment_ptr 1
  .amdhsa_system_sgpr_workgroup_id_x 1
.end_amdhsa_kernel
.text
"""
    return a.text() + "\n" + desc

def standalone(which, layer):
    def body(a):
        prologue(a); set_layer(a, layer)
        if which == 1: gen_g1(a)
        elif which == 2: gen_gdown(a, 2)
        elif which == 3: gen_g3(a)
        else: gen_gdown(a, 4, final=('frag' if layer == 0 else 'rowmajor'))
    return kernel_wrap(f"g{which}l{layer}_kernel", body)
```

```python
import sys
from p0 import gen_p0, P0_NWG, P0_LDS
from layout import *
import phases
HDR = open("interleave_layers__sliding_local_dilated__glu_gated_geglu__prompt.s.ref").read().split("; Override launch")[0]
def assemble(launches, kernels):
    s = HDR
    for (k, g, b, lds) in launches:
        s += f"; @launch kernel={k} grid=({g},1,1) block=({b},1,1) lds={lds}\n"
    s += '.amdgcn_target "amdgcn-amd-amdhsa--gfx950"\n.text\n'
    s += "\n".join(kernels)
    return s
if __name__ == "__main__":
    mode = sys.argv[2] if len(sys.argv) > 2 else "multi"
    if mode == "p0":
        out = assemble([("p0_kernel", P0_NWG, 256, P0_LDS)], [gen_p0()])
    elif mode == "multi":
        launches = [("p0_kernel", P0_NWG, 256, P0_LDS)]
        kernels = [gen_p0()]
        for layer in range(2):
            for w in (1, 2, 3, 4):
                launches.append((f"g{w}l{layer}_kernel", 256, 256, 163840))
                kernels.append(phases.standalone(w, layer))
        out = assemble(launches, kernels)
    open(sys.argv[1], "w").write(out)
```

```python
class Asm:
    uid = 0
    def __init__(self):
        self.lines = []
        self.vm = []
        self.lg = []
    cap = None
    def __call__(self, s):
        for ln in s.split("\n"):
            if self.cap is not None: self.cap.append(("i", ln, None))
            else: self.lines.append(ln)
    def capture(self, fn):
        assert self.cap is None
        self.cap = []
        fn()
        items, self.cap = self.cap, None
        txt = " ".join(t for k, t, g in items if isinstance(t, str))
        if any(k == "i" and (t.endswith(":") or "exec" in t or "s_cbranch" in t or "s_branch" in t) for k, t, g in items):
            return [("blk", items, None)]
        return items
    def emit_item(self, it):
        k, t, g = it
        if k == "i": self.lines.append(t)
        elif k == "vm": self.vmem(t, g)
        elif k == "lds": self.lds(t, g)
        elif k == "wvm":
            live = [x for x in t if self.has_vm(x)]
            if live: self.wait_vm(live)
        elif k == "wlg": self.wait_lg(t)
        elif k == "wlgall": self.wait_lg_all()
        elif k == "blk":
            for x in t: self.emit_item(x)
    def c(self, s):
        self.lines.append("; " + s)
    def label(self, name):
        if self.cap is not None: self.cap.append(("i", name + ":", None))
        else: self.lines.append(name + ":")
    def newlabel(self, base):
        Asm.uid += 1
        return f"L_{base}_{Asm.uid}"
    def vmem(self, s, tag=None):
        if self.cap is not None:
            self.cap.append(("vm", s, tag)); return
        self.lines.append(s)
        self.vm.append(tag)
    def lds(self, s, tag=None):
        if self.cap is not None:
            self.cap.append(("lds", s, tag)); return
        self.lines.append(s)
        self.lg.append(tag)
    def _cnt_after(self, lst, tags):
        if not isinstance(tags, (list, set)):
            tags = [tags]
        last = -1
        for i, t in enumerate(lst):
            if t in tags:
                last = i
        assert last >= 0, f"tag {tags} not found in {lst}"
        return len(lst) - 1 - last, last
    def wait_vm(self, tags, extra=""):
        if self.cap is not None:
            self.cap.append(("wvm", tags if isinstance(tags, list) else [tags], None)); return
        n, last = self._cnt_after(self.vm, tags)
        n = min(n, 63)
        self.lines.append(f"s_waitcnt vmcnt({n}){extra}")
        keep = n
        self.vm = self.vm[len(self.vm) - keep:] if keep > 0 else []
    def wait_vm_all(self):
        self.lines.append("s_waitcnt vmcnt(0)")
        self.vm = []
    def wait_lg(self, tags):
        if self.cap is not None:
            self.cap.append(("wlg", tags, None)); return
        n, last = self._cnt_after(self.lg, tags)
        n = min(n, 15)
        self.lines.append(f"s_waitcnt lgkmcnt({n})")
        self.lg = self.lg[len(self.lg) - n:] if n > 0 else []
    def wait_lg_all(self):
        if self.cap is not None:
            self.cap.append(("wlgall", None, None)); return
        self.lines.append("s_waitcnt lgkmcnt(0)")
        self.lg = []
    def vm_count(self, tags):
        live = [x for x in (tags if isinstance(tags, list) else [tags]) if self.has_vm(x)]
        if not live: return None
        n, last = self._cnt_after(self.vm, live)
        n = min(n, 63)
        self.vm = self.vm[len(self.vm) - n:] if n > 0 else []
        return n
    def lg_count(self, tag):
        n, last = self._cnt_after(self.lg, tag)
        n = min(n, 15)
        self.lg = self.lg[len(self.lg) - n:] if n > 0 else []
        return n
    def has_vm(self, tag):
        return tag in self.vm
    def has_lg(self, tag):
        return tag in self.lg
    STAMPS = False
    def stamp(self, i):
        if Asm.STAMPS:
            self.lines.append(f"s_memtime s[{64+2*i}:{65+2*i}]")
            self.maxstamp = max(getattr(self, 'maxstamp', -1), i)
    def dump_stamps(self, ws_off):
        if not Asm.STAMPS: return
        n = getattr(self, 'maxstamp', -1) + 1
        L = self.lines.append
        L("s_waitcnt lgkmcnt(0)")
        L("s_cmp_lg_u32 s16, 0")
        lab = self.newlabel("nostamp")
        L(f"s_cbranch_scc1 {lab}")
        L("s_lshl_b32 s60, s2, 6")
        L(f"s_add_u32 s60, s60, {ws_off}")
        L("v_mov_b32 v8, 0")
        for i in range(n):
            L(f"v_mov_b32 v9, s{64+2*i}")
            L(f"buffer_store_dword v9, v8, s[8:11], s60 offen offset:{4*i}")
            L("s_nop 1")
        L(f"{lab}:")
    def text(self):
        return "\n".join(self.lines)

def vr(base, n=1):
    return f"v{base}" if n == 1 else f"v[{base}:{base+n-1}]"
def ar(base, n=1):
    return f"a{base}" if n == 1 else f"a[{base}:{base+n-1}]"
def sr(base, n=1):
    return f"s{base}" if n == 1 else f"s[{base}:{base+n-1}]"
```

```python
S = 2048; D = 640; F = 1728; H = 32; DH = 20
NTEAM = 16
KS_D = 20
KS_F = 54
def al(x, a=4096): return (x + a - 1) // a * a
off = 0
def take(n):
    global off
    o = off
    off = al(off + n)
    return o
WQ  = take(16 * 4 * 20 * 2 * 1024)
WO  = take(8 * 2 * 10 * 5 * 1024)
WG  = take(16 * 20 * 7 * 2 * 1024)
WD  = take(8 * 9 * 2 * 3 * 5 * 1024)
CS2 = take(2 * 112 * 2 * 16 * 4)
ACT_D = NTEAM * KS_D * 8 * 1024
ACT_F = NTEAM * KS_F * 8 * 1024
STB = NTEAM * 8 * 1024
BUF_A = take(ACT_D)
BUF_B = take(ACT_D)
HBUF  = take(ACT_F)
STAT  = take(STB)
HALO  = [take(NTEAM * 20 * 1024), take(NTEAM * 20 * 1024)]
HST   = [take(NTEAM * 1024), take(NTEAM * 1024)]
X0 = BUF_A; ST0 = STAT
FLAGS = take(16384)
STAMPS = take(18*256*64)
WS_USED = off
FL_TEAM = FLAGS
FL_HALO = FLAGS + 4096
FL_TICK = FLAGS + 8192

def qcol(hp, G, c):
    if G >= 30: return None
    seg, e = divmod(G, 5)
    hh, typ = divmod(seg, 3)
    return typ * 640 + (2 * hp + hh) * 20 + e * 4 + c

def kperm(g, j):
    return 4 * g + j if j < 4 else 16 + 4 * g + (j - 4)

if __name__ == "__main__":
    for k, v in list(globals().items()):
        if k.isupper() and isinstance(v, (int, list)): print(k, v)
```

```python
from asmlib import *
from layout import *

P0_NWG = 326
P0_LDS = 40960

def gen_p0(name="p0_kernel"):
    a = Asm()
    a(f".globl {name}\n.p2align 8\n.type {name},@function\n{name}:")
    a(f"s_cmp_ge_u32 s2, {P0_NWG}")
    a(f"s_cbranch_scc1 L_p0_exit")
    a.stamp(0)
    a("s_load_dwordx2 s[4:5], s[0:1], 72")
    a("v_lshrrev_b32 v1, 6, v0")
    a("v_and_b32 v2, 63, v0")
    a("v_lshlrev_b32 v3, 4, v2")
    a("v_readfirstlane_b32 s16, v1")
    a("v_and_b32 v4, 3, v2")
    a("v_bfe_u32 v5, v2, 2, 2")
    a("v_lshrrev_b32 v6, 4, v2")
    a("s_cmp_lt_u32 s2, 108")
    a("s_cbranch_scc1 L_p0_wgu")
    a("s_cmp_lt_u32 s2, 188")
    a("s_cbranch_scc1 L_p0_wq")
    a("s_cmp_lt_u32 s2, 252")
    a("s_cbranch_scc1 L_p0_x")
    a("s_cmp_lt_u32 s2, 306")
    a("s_cbranch_scc1 L_p0_wd")
    a("s_branch L_p0_wo")

    def ws_srd():
        a("s_mov_b32 s12, s4"); a("s_mov_b32 s13, s5")
        a(f"s_mov_b32 s14, {WS_USED}"); a("s_mov_b32 s15, 0x20000")
    def src_srd(karg_off, nbytes):
        a(f"s_load_dwordx2 s[6:7], s[0:1], {karg_off}")
        a("s_waitcnt lgkmcnt(0)")
        a("s_mov_b32 s8, s6"); a("s_mov_b32 s9, s7")
        a(f"s_mov_b32 s10, {nbytes}"); a("s_mov_b32 s11, 0x20000")
        ws_srd()

    def load_rows1280(swz):
        for par in range(2):
            for ph in range(5):
                d = 10 + par * 5 + ph
                a(f"v_add_u32 v20, {64*ph}, v2")
                a(f"v_mul_u32_u24 v21, 205, v20")
                a(f"v_lshrrev_b32 v21, 14, v21")
                a(f"v_mul_u32_u24 v22, 80, v21")
                a(f"v_sub_u32 v22, v20, v22")
                a(f"s_lshl_b32 s21, s16, 1")
                a(f"s_add_u32 s21, s21, {par}")
                a(f"s_and_b32 s21, s21, 3")
                a(f"s_lshl_b32 s21, s21, 2")
                a(f"v_add_u32 v23, s21, v21")
                if swz == 'w':
                    a(f"v_and_b32 v23, 7, v23")
                    a(f"v_lshlrev_b32 v23, 1, v23")
                a(f"v_xor_b32 v22, v22, v23")
                a(f"v_lshlrev_b32 v22, 4, v22")
                a(f"v_mul_u32_u24 v21, 1280, v21")
                a(f"v_add_u32 v{d}, v21, v22")
        a("s_lshl_b32 s21, s16, 1")
        a("s_mul_i32 s22, s21, 5120")
        a("s_add_u32 s22, s22, s20")
        a("s_mul_i32 s23, s21, 5120")
        for par in range(2):
            for ph in range(5):
                a(f"s_add_u32 m0, s23, {par*5120 + ph*1024}")
                if par == 1 and ph == 0:
                    a("s_add_u32 s22, s22, 5120")
                else:
                    a("s_nop 0")
                a.vmem(f"buffer_load_dwordx4 v{10+par*5+ph}, s[8:11], s22 offen lds", "dma")
    for p in range(320):
        assert (p * 205) >> 14 == p // 80

    def w640_body(ct_stride):
        load_rows1280('w')
        a("v_lshlrev_b32 v20, 2, v6")
        a("v_add_u32 v20, v20, v5")
        a("v_and_b32 v21, 7, v20")
        a("v_mul_u32_u24 v20, 1280, v20")
        a("v_lshlrev_b32 v22, 3, v4")
        a("v_add_u32 v20, v20, v22")
        for t in range(8):
            a(f"v_xor_b32 v23, {t}, v21")
            a(f"v_lshlrev_b32 v23, 5, v23")
            a(f"v_add_u32 v{30+t}, v20, v23")
        a.stamp(1)
        a.wait_vm_all()
        a("s_barrier")
        a.stamp(2)
        for w in range(4):
            lab = a.newlabel("w640")
            if w < 3:
                a(f"s_cmp_lg_u32 s16, {w}")
                a(f"s_cbranch_scc1 {lab}")
            for i in range(10):
                T = 10 * w + i
                d = 40 + 4 * i
                a.lds(f"ds_read_b64_tr_b16 v[{d}:{d+1}], v{30 + (T & 7)} offset:{256*(T>>3)}")
                a.lds(f"ds_read_b64_tr_b16 v[{d+2}:{d+3}], v{30 + (T & 7)} offset:{256*(T>>3) + 20480}")
            a.wait_lg_all()
            for i in range(10):
                T = 10 * w + i
                ct, nt = divmod(T, 5)
                a(f"s_add_u32 s25, s24, {ct*ct_stride + nt*1024}")
                d = 40 + 4 * i
                a.vmem(f"buffer_store_dwordx4 v[{d}:{d+3}], v3, s[12:15], s25 offen")
            a("s_branch L_p0_end")
            if w < 3:
                a.label(lab)
        a.vm = []

    a.label("L_p0_wo")
    src_srd(16, 640 * 640 * 2)
    a("s_sub_u32 s17, s2, 306")
    a("s_cmp_lg_u32 s2, 325")
    a("s_cbranch_scc1 L_p0_noz")
    a("v_mov_b32 v40, 0\nv_mov_b32 v41, 0\nv_mov_b32 v42, 0\nv_mov_b32 v43, 0")
    a("v_lshlrev_b32 v44, 4, v0")
    for i in range(4):
        a(f"s_mov_b32 s25, {FLAGS + i*4096}")
        a(f"buffer_store_dwordx4 v[40:43], v44, s[12:15], s25 offen")
    a.label("L_p0_noz")
    a("s_mul_i32 s20, s17, 40960")
    a("s_mul_i32 s24, s17, 5120")
    a(f"s_add_u32 s24, s24, {WO}")
    w640_body(102400)

    a.label("L_p0_wd")
    src_srd(48, 1728 * 640 * 2)
    a("s_sub_u32 s17, s2, 252")
    a("s_mul_i32 s20, s17, 40960")
    a("s_cmp_ge_u32 s17, 27")
    a("s_cselect_b32 s26, 1, 0")
    a("s_mul_i32 s27, s26, 27")
    a("s_sub_u32 s27, s17, s27")
    a("s_mul_i32 s28, s27, 171")
    a("s_lshr_b32 s28, s28, 9")
    a("s_mul_i32 s29, s28, 3")
    a("s_sub_u32 s29, s27, s29")
    a("s_lshl_b32 s28, s28, 1")
    a("s_add_u32 s28, s28, s26")
    a("s_mul_i32 s28, s28, 3")
    a("s_add_u32 s28, s28, s29")
    a("s_mul_i32 s24, s28, 5120")
    a(f"s_add_u32 s24, s24, {WD}")
    for r in range(27): assert (r * 171) >> 9 == r // 3
    w640_body(276480)

    a.label("L_p0_wgu")
    a("s_cmp_ge_u32 s2, 54")
    a("s_cselect_b32 s17, 1, 0")
    a("s_mul_i32 s18, s17, 54")
    a("s_sub_u32 s18, s2, s18")
    a("s_lshr_b32 s19, s18, 1")
    a("s_and_b32 s18, s18, 1")
    a("s_lshl_b32 s26, s17, 3")
    a("s_add_u32 s26, s26, 32")
    a("s_load_dwordx2 s[6:7], s[0:1], s26")
    a("s_waitcnt lgkmcnt(0)")
    a("s_mov_b32 s8, s6"); a("s_mov_b32 s9, s7")
    a(f"s_mov_b32 s10, {640*1728*2}"); a("s_mov_b32 s11, 0x20000")
    ws_srd()
    a("v_lshrrev_b32 v20, 3, v2")
    a("v_and_b32 v21, 7, v2")
    a("v_bfe_u32 v22, v20, 1, 2")
    a("v_lshlrev_b32 v22, 1, v22")
    a("v_xor_b32 v21, v21, v22")
    a("v_lshlrev_b32 v21, 4, v21")
    a("v_mul_u32_u24 v20, 3456, v20")
    a("v_add_u32 v10, v20, v21")
    a(f"s_mul_i32 s20, s18, {320*3456}")
    a("s_lshl_b32 s21, s19, 7")
    a("s_add_u32 s20, s20, s21")
    a(f"s_mul_i32 s21, s16, {80*3456}")
    a("s_add_u32 s20, s20, s21")
    a("s_mul_i32 s23, s16, 10240")
    for i in range(10):
        a(f"s_add_u32 m0, s23, {i*1024}")
        if i > 0: a(f"s_add_u32 s20, s20, {8*3456}")
        else: a("s_nop 0")
        a.vmem(f"buffer_load_dwordx4 v10, s[8:11], s20 offen lds", "dma")
    a("v_lshlrev_b32 v20, 2, v6")
    a("v_add_u32 v20, v20, v5")
    a("v_bfe_u32 v21, v20, 1, 2")
    a("v_xor_b32 v21, s16, v21")
    a("v_lshlrev_b32 v21, 5, v21")
    a("v_lshlrev_b32 v20, 7, v20")
    a("v_add_u32 v20, v20, v21")
    a("v_lshlrev_b32 v22, 3, v4")
    a("v_add_u32 v30, v20, v22")
    a("s_lshl_b32 s24, s19, 2")
    a("s_add_u32 s24, s24, s16")
    a("s_mul_i32 s25, s24, 147")
    a("s_lshr_b32 s25, s25, 10")
    for T in range(112): assert (T * 147) >> 10 == T // 7
    a("s_mul_i32 s26, s25, 7")
    a("s_sub_u32 s26, s24, s26")
    a("s_mul_i32 s27, s25, 20")
    a("s_mul_i32 s28, s18, 10")
    a("s_add_u32 s27, s27, s28")
    a("s_mul_i32 s27, s27, 7")
    a("s_add_u32 s27, s27, s26")
    a("s_lshl_b32 s27, s27, 11")
    a("s_lshl_b32 s28, s17, 10")
    a("s_add_u32 s27, s27, s28")
    a(f"s_add_u32 s27, s27, {WG}")
    a("s_mul_i32 s28, s18, 112")
    a("s_add_u32 s28, s28, s24")
    a("s_lshl_b32 s28, s28, 1")
    a("s_add_u32 s28, s28, s17")
    a("s_lshl_b32 s28, s28, 6")
    a(f"s_add_u32 s28, s28, {CS2}")
    a("v_mov_b32 v80, 0x3f803f80\nv_mov_b32 v81, 0x3f803f80\nv_mov_b32 v82, 0x3f803f80\nv_mov_b32 v83, 0x3f803f80")
    a("v_mov_b32 v84, 0\nv_mov_b32 v85, 0\nv_mov_b32 v86, 0\nv_mov_b32 v87, 0")
    a.stamp(1)
    a.wait_vm_all()
    a("s_barrier")
    a.stamp(2)
    for k in range(10):
        d = 40 + 4 * k
        a.lds(f"ds_read_b64_tr_b16 v[{d}:{d+1}], v30 offset:{k*4096}")
        a.lds(f"ds_read_b64_tr_b16 v[{d+2}:{d+3}], v30 offset:{k*4096 + 2048}")
    a.wait_lg_all()
    for k in range(10):
        d = 40 + 4 * k
        a.vmem(f"buffer_store_dwordx4 v[{d}:{d+3}], v3, s[12:15], s27 offen")
        a(f"v_mfma_f32_16x16x32_bf16 v[84:87], v[{d}:{d+3}], v[80:83], v[84:87]")
        if k < 9: a("s_add_u32 s27, s27, 14336")
    a("s_nop 7\ns_nop 3")
    a("v_and_b32 v20, 15, v2")
    a("v_lshlrev_b32 v21, 4, v6")
    a("v_cmp_eq_u32 vcc, 0, v20")
    a("s_and_saveexec_b64 s[30:31], vcc")
    a("buffer_store_dwordx4 v[84:87], v21, s[12:15], s28 offen")
    a("s_mov_b64 exec, s[30:31]")
    a("s_branch L_p0_end")
    a.vm = []

    a.label("L_p0_wq")
    src_srd(8, 640 * 1920 * 2)
    a("s_sub_u32 s17, s2, 108")
    a("s_and_b32 s18, s17, 3")
    a("s_lshr_b32 s17, s17, 2")
    a("s_mul_i32 s19, s18, 320")
    a("s_and_b32 s26, s19, 0xffffff80")
    a("s_sub_u32 s19, s19, s26")
    for ph in range(3):
        a(f"v_add_u32 v20, {64*ph}, v2")
        a(f"v_mul_u32_u24 v21, 683, v20")
        a(f"v_lshrrev_b32 v21, 14, v21")
        a(f"v_mul_u32_u24 v22, 24, v21")
        a(f"v_sub_u32 v22, v20, v22")
        a(f"v_lshlrev_b32 v22, 4, v22")
        a(f"v_mul_u32_u24 v21, 3840, v21")
        a(f"v_add_u32 v{10+ph}, v21, v22")
    for c in range(192): assert (c * 683) >> 14 == c // 24
    a(f"s_mul_i32 s20, s17, {32*3840}")
    a("s_add_u32 s20, s20, s26")
    for w in range(4):
        lab = a.newlabel("wqld")
        if w < 3:
            a(f"s_cmp_lg_u32 s16, {w}")
            a(f"s_cbranch_scc1 {lab}")
        for mi in range(3):
            m = 3 * w + mi
            typ, r0 = m // 4, 8 * (m % 4)
            a(f"s_add_u32 s22, s20, {r0*3840 + typ*1280}")
            for ph in range(3):
                a(f"s_mov_b32 m0, {(m*3+ph)*1024}")
                a("s_nop 0")
                a(f"buffer_load_dwordx4 v{10+ph}, s[8:11], s22 offen lds")
        a("s_branch L_p0_wq_ld")
        if w < 3: a.label(lab)
    a.label("L_p0_wq_ld")
    a("v_lshlrev_b32 v20, 2, v6")
    a("v_add_u32 v20, v20, v5")
    a("v_mul_u32_u24 v20, 384, v20")
    a("s_mul_i32 s21, s16, 80")
    a("s_add_u32 s21, s21, s19")
    a("v_add_u32 v20, s21, v20")
    for wt in range(8):
        a(f"v_add_u32 v21, {4*wt}, v4")
        a(f"v_min_u32 v21, 29, v21")
        a(f"v_mul_u32_u24 v22, 52, v21")
        a(f"v_lshrrev_b32 v22, 8, v22")
        a(f"v_mul_u32_u24 v23, 5, v22")
        a(f"v_sub_u32 v23, v21, v23")
        a(f"v_cmp_le_u32 vcc, 3, v22")
        a(f"v_lshlrev_b32 v23, 3, v23")
        a("s_nop 0")
        a(f"v_cndmask_b32 v24, 0, 1, vcc")
        a(f"v_mul_u32_u24 v25, 3, v24")
        a(f"v_sub_u32 v25, v22, v25")
        a(f"v_mul_u32_u24 v25, 12288, v25")
        a(f"v_mul_u32_u24 v24, 40, v24")
        a(f"v_add3_u32 v23, v23, v24, v25")
        a(f"v_add_u32 v{30+wt}, v20, v23")
    a("s_lshl_b32 s24, s18, 2")
    a("s_add_u32 s24, s24, s16")
    a("s_mul_i32 s24, s24, 163840")
    a("s_lshl_b32 s25, s17, 11")
    a("s_add_u32 s24, s24, s25")
    a(f"s_add_u32 s24, s24, {WQ}")
    a.stamp(1)
    a("s_waitcnt vmcnt(0)")
    a("s_barrier")
    a.stamp(2)
    for wt in range(8):
        d = 40 + 4 * wt
        a.lds(f"ds_read_b64_tr_b16 v[{d}:{d+1}], v{30+wt}")
        a.lds(f"ds_read_b64_tr_b16 v[{d+2}:{d+3}], v{30+wt} offset:{16*384}")
    a.wait_lg_all()
    for wt in range(8):
        w, t = wt >> 1, wt & 1
        d = 40 + 4 * wt
        a(f"s_add_u32 s25, s24, {w*40960 + t*1024}")
        a(f"buffer_store_dwordx4 v[{d}:{d+3}], v3, s[12:15], s25 offen")
    a("s_branch L_p0_end")

    a.label("L_p0_x")
    src_srd(0, 2048 * 640 * 2)
    a("s_sub_u32 s17, s2, 188")
    a("s_mul_i32 s20, s17, 40960")
    load_rows1280('x')
    a("v_and_b32 v20, 15, v2")
    a("v_mul_u32_u24 v21, 1280, v20")
    a("v_and_b32 v22, 1, v6")
    a("v_lshlrev_b32 v22, 3, v22")
    a("v_add_u32 v21, v21, v22")
    a("s_lshr_b32 s21, s16, 1")
    a("s_mul_i32 s21, s21, 20480")
    a("v_add_u32 v21, s21, v21")
    a("v_lshrrev_b32 v22, 1, v6")
    for kk in range(4):
        for wh in range(2):
            a(f"v_add_u32 v23, {4*kk+2*wh}, v22")
            a(f"v_xor_b32 v23, v23, v20")
            a(f"v_lshlrev_b32 v23, 4, v23")
            a(f"v_add_u32 v{30+kk*2+wh}, v21, v23")
    a("s_lshl_b32 s24, s17, 1")
    a("s_lshr_b32 s25, s16, 1")
    a("s_add_u32 s24, s24, s25")
    a("s_lshr_b32 s25, s24, 3")
    a("s_mul_i32 s25, s25, 163840")
    a("s_and_b32 s26, s24, 7")
    a("s_lshl_b32 s26, s26, 10")
    a("s_add_u32 s25, s25, s26")
    a("s_and_b32 s26, s16, 1")
    a("s_mul_i32 s27, s26, 81920")
    a("s_add_u32 s25, s25, s27")
    a(f"s_add_u32 s25, s25, {X0}")
    a("s_lshl_b32 s28, s24, 10")
    a("s_lshl_b32 s27, s26, 3")
    a("s_add_u32 s28, s28, s27")
    a(f"s_add_u32 s28, s28, {ST0}")
    a("v_mov_b32 v84, 0\nv_mov_b32 v85, 0")
    a("v_mov_b32 v80, 0x3f803f80")
    a.stamp(1)
    a.wait_vm_all()
    a("s_barrier")
    a.stamp(2)
    for half in range(2):
        lab = a.newlabel("xh")
        if half == 0:
            a("s_cmp_lg_u32 s26, 0")
            a(f"s_cbranch_scc1 {lab}")
        for i in range(10):
            ks = 10 * half + i
            aa, kk = ks >> 2, ks & 3
            d = 40 + 4 * i
            a.lds(f"ds_read_b64 v[{d}:{d+1}], v{30+kk*2} offset:{aa*256}")
            a.lds(f"ds_read_b64 v[{d+2}:{d+3}], v{30+kk*2+1} offset:{aa*256}")
        a("s_branch L_p0_x_rd")
        if half == 0: a.label(lab)
    a.label("L_p0_x_rd")
    a.wait_lg_all()
    a("s_lshr_b32 s30, s24, 3")
    a("s_mul_i32 s30, s30, 20480")
    a("s_mul_i32 s31, s26, 10240")
    a("s_add_u32 s30, s30, s31")
    a(f"s_add_u32 s30, s30, {HALO[0]}")
    a("s_and_b32 s31, s24, 7")
    xl = a.newlabel("xnohalo")
    a("s_cmp_lg_u32 s31, 7")
    a(f"s_cbranch_scc1 {xl}")
    for i in range(10):
        d = 40 + 4 * i
        a(f"buffer_store_dwordx4 v[{d}:{d+3}], v3, s[12:15], s30 offen")
        a("s_add_u32 s30, s30, 1024")
    a.label(xl)
    for i in range(10):
        d = 40 + 4 * i
        a(f"buffer_store_dwordx4 v[{d}:{d+3}], v3, s[12:15], s25 offen")
        if i < 9: a("s_add_u32 s25, s25, 8192")
        for j in range(4):
            a(f"v_dot2_f32_bf16 v84, v{d+j}, v80, v84")
            a(f"v_dot2_f32_bf16 v85, v{d+j}, v{d+j}, v85")
    for reg in (84, 85):
        a(f"s_nop 2")
        a(f"v_mov_b32 v86, v{reg}")
        a("s_nop 1")
        a(f"v_permlane16_swap_b32 v{reg}, v86")
        a("s_nop 1")
        a(f"v_add_f32 v{reg}, v{reg}, v86")
        a(f"v_mov_b32 v86, v{reg}")
        a("s_nop 1")
        a(f"v_permlane32_swap_b32 v{reg}, v86")
        a("s_nop 1")
        a(f"v_add_f32 v{reg}, v{reg}, v86")
    a("v_cmp_eq_u32 vcc, 0, v6")
    a("s_nop 1")
    a("v_cndmask_b32 v84, 0, v84, vcc")
    a("v_cndmask_b32 v85, 0, v85, vcc")
    a("buffer_store_dwordx2 v[84:85], v3, s[12:15], s28 offen")
    a("s_cmp_lg_u32 s31, 7")
    a("s_cbranch_scc1 L_p0_end")
    a("s_lshr_b32 s30, s24, 3")
    a("s_lshl_b32 s30, s30, 10")
    a("s_add_u32 s30, s30, s27")
    a(f"s_add_u32 s30, s30, {HST[0]}")
    a("buffer_store_dwordx2 v[84:85], v3, s[12:15], s30 offen")
    a.label("L_p0_end")
    if Asm.STAMPS:
        a.stamp(3)
        a("s_waitcnt vmcnt(0)")
        a.stamp(4)
        a("s_waitcnt lgkmcnt(0)")
        a("s_cmp_lg_u32 s16, 0")
        a("s_cbranch_scc1 L_p0_exit")
        a("s_lshl_b32 s40, s2, 6")
        a(f"s_add_u32 s40, s40, {STAMPS + 2*16384}")
        a("v_mov_b32 v8, 0")
        for i in range(5):
            a(f"v_mov_b32 v9, s{64+2*i}")
            a(f"buffer_store_dword v9, v8, s[12:15], s40 offen offset:{4*i}")
            a("s_nop 1")
    a.label("L_p0_exit")
    a("s_endpgm")
    desc = f""".section .rodata,"a"
.p2align 6
.amdhsa_kernel {name}
  .amdhsa_next_free_vgpr 96
  .amdhsa_next_free_sgpr 80
  .amdhsa_accum_offset 96
  .amdhsa_group_segment_fixed_size 0
  .amdhsa_kernarg_size 80
  .amdhsa_user_sgpr_count 2
  .amdhsa_user_sgpr_kernarg_segment_ptr 1
  .amdhsa_system_sgpr_workgroup_id_x 1
.end_amdhsa_kernel
.text
"""
    return a.text() + "\n" + desc

if __name__ == "__main__":
    print(gen_p0())
```

```python
from asmlib import *
from layout import *

S_WS = 4
S_OUT = 6
SRD = "s[8:11]"
SRD_O = "s[12:15]"
S_WAVE, S_TEAM, S_MEM = 16, 17, 18
S_XIN, S_STIN, S_HALO, S_HSTR, S_HST = 20, 21, 22, 23, 24
S_O, S_X1, S_ST1, S_H, S_XO, S_STO = 25, 26, 27, 28, 29, 30
S_LAYER = 31
V_TID, V_L16, V_LANE, V_TOK, V_G = 0, 1, 2, 3, 4

ONES = 0x3f803f80

def prologue(a, role_from_wg=True):
    a("s_load_dwordx2 s[4:5], s[0:1], 72")
    a("s_load_dwordx2 s[6:7], s[0:1], 56")
    a("v_lshrrev_b32 v5, 6, v0")
    a("v_and_b32 v2, 63, v0")
    a("v_lshlrev_b32 v1, 4, v2")
    a("v_readfirstlane_b32 s16, v5")
    a("v_and_b32 v3, 15, v2")
    a("v_lshrrev_b32 v4, 4, v2")
    if role_from_wg:
        a("s_lshr_b32 s17, s2, 4")
        a("s_and_b32 s18, s2, 15")
    a("s_waitcnt lgkmcnt(0)")
    a("s_mov_b32 s8, s4"); a("s_mov_b32 s9, s5"); a(f"s_mov_b32 s10, {WS_USED}"); a("s_mov_b32 s11, 0x20000")
    a("s_mov_b32 s12, s6"); a("s_mov_b32 s13, s7"); a(f"s_mov_b32 s14, {2048*640*2}"); a("s_mov_b32 s15, 0x20000")

def set_layer(a, layer):
    t = S_TEAM
    a(f"s_mul_i32 s32, s{t}, 163840")
    a(f"s_lshl_b32 s33, s{t}, 13")
    a(f"s_mul_i32 s34, s{t}, 442368")
    xin = X0 if layer == 0 else X2
    stin = ST0 if layer == 0 else ST2
    a(f"s_add_u32 s{S_XIN}, s32, {xin}")
    a(f"s_add_u32 s{S_STIN}, s33, {stin}")
    a(f"s_add_u32 s{S_O}, s32, {O_[layer]}")
    a(f"s_add_u32 s{S_X1}, s32, {X1[layer]}")
    a(f"s_add_u32 s{S_ST1}, s33, {ST1[layer]}")
    a(f"s_add_u32 s{S_H}, s34, {H_[layer]}")
    a(f"s_add_u32 s{S_XO}, s32, {X2}")
    a(f"s_add_u32 s{S_STO}, s33, {ST2}")
    a(f"s_mov_b32 s{S_LAYER}, {layer}")
    a(f"s_max_u32 s35, s{t}, 1")
    a(f"s_sub_u32 s35, s35, 1")
    if layer == 0:
        a(f"s_mul_i32 s36, s35, 163840")
        a(f"s_add_u32 s{S_HALO}, s36, {X0 + 7*1024}")
        a(f"s_mov_b32 s{S_HSTR}, 8192")
        a(f"s_lshl_b32 s36, s35, 13")
        a(f"s_add_u32 s{S_HST}, s36, {ST0 + 7*1024}")
    else:
        a(f"s_mul_i32 s36, s35, 20480")
        a(f"s_add_u32 s{S_HALO}, s36, {HALO2}")
        a(f"s_mov_b32 s{S_HSTR}, 1024")
        a(f"s_lshl_b32 s36, s35, 10")
        a(f"s_add_u32 s{S_HST}, s36, {HST2}")

def xreduce_g(a, regs, tmp):
    for r, t in zip(regs, tmp): a(f"v_mov_b32 v{t}, v{r}")
    a("s_nop 1")
    for r, t in zip(regs, tmp): a(f"v_permlane16_swap_b32 v{r}, v{t}")
    a("s_nop 1")
    for r, t in zip(regs, tmp): a(f"v_add_f32 v{r}, v{r}, v{t}")
    for r, t in zip(regs, tmp): a(f"v_mov_b32 v{t}, v{r}")
    a("s_nop 1")
    for r, t in zip(regs, tmp): a(f"v_permlane32_swap_b32 v{r}, v{t}")
    a("s_nop 1")
    for r, t in zip(regs, tmp): a(f"v_add_f32 v{r}, v{r}, v{t}")

def stats_finish(a, src, dst, tmp):
    a(f"v_add_f32 v{dst}, v{src}, v{src+2}")
    a(f"v_add_f32 v{dst+1}, v{src+1}, v{src+3}")
    xreduce_g(a, [dst, dst + 1], [tmp, tmp + 1])
    a(f"v_mul_f32 v{dst}, {1.0/640.0!r}, v{dst}")
    a(f"v_mul_f32 v{dst+1}, {1.0/640.0!r}, v{dst+1}")
    a(f"v_fma_f32 v{dst+1}, -v{dst}, v{dst}, v{dst+1}")
    a(f"v_max_f32 v{dst+1}, 0, v{dst+1}")
    a(f"v_add_f32 v{dst+1}, 0x3727c5ac, v{dst+1}")
    a(f"v_rsq_f32 v{dst+1}, v{dst+1}")
    a("s_nop 0")

MF = "v_mfma_f32_16x16x32_bf16"

def stream_loop(a, nfrag, read_fn, mfma_fn, slot_base, PD=5, pre_hook=None):
    NS = PD + 1
    def rd(f):
        if pre_hook: pre_hook(f)
        read_fn(f, slot_base + 4 * (f % NS))
    for f in range(min(PD, nfrag)): rd(f)
    for f in range(nfrag):
        if f + PD < nfrag: rd(f + PD)
        a.wait_lg(("fr", f))
        mfma_fn(f, slot_base + 4 * (f % NS))

G1_HALO, G1_RING, G1_STATS = 0, 20480, 151552
QKV_STRIDE = 304
def gen_g1(a):
    ACC = 32
    SLOT = 104
    def acc(j, t): return ACC + (j * 2 + t) * 4
    def wreg(ks, t): return (ks * 2 + t) * 4
    a.c("---- G1 prologue")
    a.stamp(1)
    a(f"s_lshl_b32 s32, s{S_MEM}, 2")
    a(f"s_add_u32 s32, s32, s{S_WAVE}")
    a(f"s_mul_i32 s32, s32, 40960")
    a(f"s_add_u32 s32, s32, {WQ}")
    a(f"s_lshl_b32 s33, s{S_WAVE}, 10")
    a(f"s_add_u32 s33, s33, s{S_STIN}")
    a.vmem(f"buffer_load_dwordx4 v[8:11], v1, {SRD}, s33 offen sc1", "st")
    a(f"s_add_u32 s33, s33, 4096")
    a.vmem(f"buffer_load_dwordx4 v[12:15], v1, {SRD}, s33 offen sc1", "st")
    a(f"s_lshl_b32 s34, s{S_WAVE}, 13")
    a(f"s_add_u32 s35, s34, s{S_XIN}")
    a(f"s_add_u32 s34, s34, {G1_RING}")
    def dma_stage(s):
        slot = s % 4
        for hf in range(2):
            a(f"s_add_u32 m0, s34, {slot*32768 + hf*4096}")
            a(f"s_add_u32 s36, s35, {s*32768 + hf*4096}")
            for i in range(4):
                a.vmem(f"buffer_load_dwordx4 v1, {SRD}, s36 offen offset:{i*1024} sc1 lds", ("x", s))
    def wload(ks0):
        for kp in range(2):
            a(f"s_add_u32 s37, s32, {(ks0 + 2*kp)*2048}")
            for i in range(4):
                ks = ks0 + 2 * kp + (i >> 1); t = i & 1
                r = wreg(ks, t)
                a.vmem(f"buffer_load_dwordx4 a[{r}:{r+3}], v1, {SRD}, s37 offen offset:{i*1024}", ("w", ks // 4))
    for s in range(4):
        wload(4 * s); dma_stage(s)
    wload(16)
    a(f"v_lshrrev_b32 v5, 2, v0")
    a(f"v_lshlrev_b32 v5, 10, v5")
    a(f"v_and_b32 v6, 3, v0")
    a(f"v_lshlrev_b32 v6, 8, v6")
    a(f"v_add_u32 v5, v5, v6")
    for i in range(4): a(f"v_mov_b32 v{16+i}, {hex(ONES)}")
    a(f"v_cmp_gt_u32 vcc, 80, v0")
    a(f"s_and_saveexec_b64 s[38:39], vcc")
    lab = a.newlabel("g1ones")
    a(f"s_cbranch_execz {lab}")
    a(f"ds_write_b128 v5, v[16:19] offset:{G1_HALO}")
    a.label(lab)
    a(f"s_mov_b64 exec, s[38:39]")
    a(f"s_mul_i32 s36, s{S_WAVE}, 5")
    a(f"s_mul_i32 s37, s36, s{S_HSTR}")
    a(f"s_add_u32 s37, s37, s{S_HALO}")
    a(f"s_lshl_b32 s36, s36, 10")
    a(f"v_cmp_ne_u32 vcc, 0, v3")
    a(f"s_and_saveexec_b64 s[38:39], vcc")
    for i in range(5):
        a(f"s_add_u32 m0, s36, {G1_HALO + i*1024}")
        if i: a(f"s_add_u32 s37, s37, s{S_HSTR}")
        else: a("s_nop 0")
        a.vmem(f"buffer_load_dwordx4 v1, {SRD}, s37 offen sc1 lds", "halo")
    a(f"s_mov_b64 exec, s[38:39]")
    a.vmem(f"buffer_load_dwordx4 v[20:23], v1, {SRD}, s{S_HST} offen sc1", "hst")
    for r in range(ACC, ACC + 72): a(f"v_mov_b32 v{r}, 0")
    a(f"v_add_u32 v5, {G1_RING}, v1")
    a(f"v_add_u32 v6, {G1_RING + 65536}, v1")
    a.wait_vm("st")
    stats_finish(a, 8, 24, 28)
    stats_finish(a, 12, 26, 28)
    a(f"s_lshl_b32 s36, s{S_WAVE}, 7")
    a(f"s_add_u32 s36, s36, {G1_STATS + 128}")
    a(f"v_lshlrev_b32 v7, 3, v3")
    a(f"v_add_u32 v7, s36, v7")
    a(f"v_cmp_eq_u32 vcc, 0, v4")
    a(f"s_and_saveexec_b64 s[38:39], vcc")
    a(f"ds_write_b64 v7, v[24:25]")
    a(f"ds_write_b64 v7, v[26:27] offset:512")
    a(f"s_mov_b64 exec, s[38:39]")
    a("s_waitcnt lgkmcnt(0)")
    a.lg = []
    a.stamp(2)
    def read_fn(f, sl):
        if f < 160:
            ks, tt = divmod(f, 8); s, j = divmod(ks, 4); slot = s % 4
            off = slot * 32768 + (j * 8 + tt) * 1024
            base = "v5" if off < 65536 else "v6"
            a.lds(f"ds_read_b128 v[{sl}:{sl+3}], {base} offset:{off % 65536}", ("fr", f))
        else:
            ks = f - 160
            a.lds(f"ds_read_b128 v[{sl}:{sl+3}], v1 offset:{G1_HALO + ks*1024}", ("fr", f))
    def mfma_fn(f, sl):
        if f < 160: ks, tt = divmod(f, 8); j = tt + 1
        else: ks, j = f - 160, 0
        for t in range(2):
            w = wreg(ks, t); d = acc(j, t)
            a(f"{MF} v[{d}:{d+3}], a[{w}:{w+3}], v[{sl}:{sl+3}], v[{d}:{d+3}]")
    def pre_hook(f):
        if f < 160 and f % 32 == 0:
            s = f // 32
            tags = [("x", s), ("w", s)]
            live = [t for t in tags if a.has_vm(t)]
            if live: a.wait_vm(live)
            a("s_barrier")
            if s == 2: dma_stage(4)
        if f == 160:
            if a.has_vm("halo") or a.has_vm("hst"): a.wait_vm([t for t in ("halo", "hst") if a.has_vm(t)])
            a("s_barrier")
    stream_loop(a, 180, read_fn, mfma_fn, SLOT, PD=5, pre_hook=pre_hook)
    a.c("---- G1 epilogue")
    a.stamp(3)
    stats_finish(a, 20, 24, 28)
    a(f"v_lshlrev_b32 v7, 3, v3")
    a(f"v_add_u32 v7, {G1_STATS}, v7")
    a(f"v_cmp_eq_u32 vcc, 0, v4")
    a(f"s_and_saveexec_b64 s[38:39], vcc")
    a(f"ds_write_b64 v7, v[24:25]")
    a(f"s_mov_b64 exec, s[38:39]")
    a("s_waitcnt lgkmcnt(0)")
    a("s_barrier")
    ST = 104
    for j in range(9):
        a.lds(f"ds_read_b64 v[{ST+2*j}:{ST+2*j+1}], v7 offset:{j*128}", "stv")
    CS = 124
    for t in range(2):
        for r in range(4):
            a(f"v_mov_b32_dpp v{CS+4*t+r}, v{acc(0,t)+r} row_newbcast:0 row_mask:0xf bank_mask:0xf")
    for t in range(2):
        a(f"s_lshl_b32 s36, s{S_WAVE}, 3")
        a(f"s_add_u32 s36, s36, {4*t}")
        a(f"v_add_u32 v8, s36, v4")
        a(f"v_mul_u32_u24 v9, 52, v8")
        a(f"v_lshrrev_b32 v9, 8, v9")
        a(f"v_mul_u32_u24 v10, 5, v9")
        a(f"v_sub_u32 v10, v8, v10")
        a(f"v_mul_u32_u24 v9, 48, v9")
        a(f"v_lshlrev_b32 v10, 3, v10")
        a(f"v_add_u32 v9, v9, v10")
        a(f"v_mul_u32_u24 v10, {QKV_STRIDE}, v3")
        a(f"v_add_u32 v{12+t}, v9, v10")
    for G in range(32): assert (G * 52) >> 8 == G // 5
    a.wait_lg_all()
    TMP = 132
    for j in range(9):
        for t in range(2):
            d = acc(j, t); m = ST + 2 * j; tp = TMP + ((j * 2 + t) % 4) * 6
            for h in range(2):
                a(f"v_pk_fma_f32 v[{d+2*h}:{d+2*h+1}], v[{CS+4*t+2*h}:{CS+4*t+2*h+1}], v[{m}:{m+1}], v[{d+2*h}:{d+2*h+1}] op_sel_hi:[1,0,1] neg_lo:[0,1,0] neg_hi:[0,1,0]")
            for h in range(2):
                a(f"v_pk_mul_f32 v[{d+2*h}:{d+2*h+1}], v[{d+2*h}:{d+2*h+1}], v[{m}:{m+1}] op_sel:[0,1] op_sel_hi:[1,1]")
            a(f"v_cvt_pk_bf16_f32 v{tp}, v{d}, v{d+1}")
            a(f"v_cvt_pk_bf16_f32 v{tp+1}, v{d+2}, v{d+3}")
            a.lds(f"ds_write_b64 v{12+t}, v[{tp}:{tp+1}] offset:{j*16*QKV_STRIDE}", "qw")
    a.wait_lg_all()
    a("s_barrier")
    a.stamp(4)
    a(f"s_and_b32 s36, s{S_WAVE}, 1")
    a(f"s_lshr_b32 s37, s{S_WAVE}, 1")
    a(f"s_lshl_b32 s40, s36, 6")
    a(f"v_add_u32 v8, s40, v2")
    a(f"v_add_u32 v9, 2, v8")
    a(f"v_mul_u32_u24 v9, {QKV_STRIDE}, v9")
    a(f"s_mul_i32 s41, s37, 144")
    a(f"v_add_u32 v9, s41, v9")
    a(f"s_lshl_b32 s41, s{S_TEAM}, 7")
    a(f"v_add_u32 v10, s41, v8")
    Q, KK, VV = 192, 32, 112
    def rd40(dst, off, tag):
        a.lds(f"ds_read_b128 v[{dst}:{dst+3}], v9 offset:{off}", tag)
        a.lds(f"ds_read_b128 v[{dst+4}:{dst+7}], v9 offset:{off+16}", tag)
        a.lds(f"ds_read_b64 v[{dst+8}:{dst+9}], v9 offset:{off+32}", tag)
    rd40(Q, 14 * QKV_STRIDE, "q")
    for m in range(4): rd40(KK + 10 * m, (14 - 2 * m) * QKV_STRIDE + 48, ("k", m))
    LG = 204
    def logit(m):
        a(f"v_dot2_f32_bf16 v{LG+m}, v{Q}, v{KK+10*m}, 0")
        for c in range(1, 10):
            a(f"v_dot2_f32_bf16 v{LG+m}, v{Q+c}, v{KK+10*m+c}, v{LG+m}")
    for m in range(8):
        a.wait_lg([("k", m)])
        if m + 4 < 8: rd40(KK + 10 * (m + 4), (14 - 2 * (m + 4)) * QKV_STRIDE + 48, ("k", m + 4))
        logit(m)
    for m in range(4): rd40(VV + 10 * m, (14 - 2 * m) * QKV_STRIDE + 96, ("v", m))
    a("s_nop 2")
    a(f"v_mov_b32 v11, 0xf149f2ca")
    for m in range(1, 8):
        a(f"v_cmp_le_u32 vcc, {2*m}, v10")
        a("s_nop 1")
        a(f"v_cndmask_b32 v{LG+m}, v11, v{LG+m}, vcc")
    a(f"v_max3_f32 v12, v{LG}, v{LG+1}, v{LG+2}")
    a(f"v_max3_f32 v12, v12, v{LG+3}, v{LG+4}")
    a(f"v_max3_f32 v12, v12, v{LG+5}, v{LG+6}")
    a(f"v_max_f32 v12, v12, v{LG+7}")
    import math
    cexp = (20 ** -0.5) * math.log2(math.e)
    a(f"v_mov_b32 v13, {cexp!r}")
    a(f"v_mul_f32 v12, v12, v13")
    for m in range(8): a(f"v_fma_f32 v{LG+m}, v{LG+m}, v13, -v12")
    for m in range(8): a(f"v_exp_f32 v{LG+m}, v{LG+m}")
    a("s_nop 0")
    a(f"v_add_f32 v12, v{LG}, v{LG+1}")
    for m in range(2, 8): a(f"v_add_f32 v12, v12, v{LG+m}")
    a(f"v_rcp_f32 v12, v12")
    a("s_nop 0")
    for m in range(8): a(f"v_mul_f32 v{LG+m}, v{LG+m}, v12")
    P = 212
    for h in range(4): a(f"v_cvt_pk_bf16_f32 v{P+h}, v{LG+2*h}, v{LG+2*h+1}")
    for m in range(4, 8): rd40(VV + 10 * m, (14 - 2 * m) * QKV_STRIDE + 96, ("v", m))
    a(f"s_mov_b32 s42, 0x05040100")
    a(f"s_mov_b32 s43, 0x07060302")
    OO = 32
    for h in range(4):
        a.wait_lg([("v", 2 * h + 1)])
        for c in range(10):
            v0_, v1_ = VV + 20 * h + c, VV + 20 * h + 10 + c
            tl, th = 216 + 2 * (c % 4), 217 + 2 * (c % 4)
            a(f"v_perm_b32 v{tl}, v{v1_}, v{v0_}, s42")
            a(f"v_perm_b32 v{th}, v{v1_}, v{v0_}, s43")
            c0 = "0" if h == 0 else f"v{OO+2*c}"
            c1 = "0" if h == 0 else f"v{OO+2*c+1}"
            a(f"v_dot2_f32_bf16 v{OO+2*c}, v{P+h}, v{tl}, {c0}")
            a(f"v_dot2_f32_bf16 v{OO+2*c+1}, v{P+h}, v{th}, {c1}")
    a("s_nop 2")
    OP = 56
    for c in range(10): a(f"v_cvt_pk_bf16_f32 v{OP+c}, v{OO+2*c}, v{OO+2*c+1}")
    a(f"s_lshl_b32 s36, s36, 12")
    a(f"v_lshlrev_b32 v14, 10, v4")
    a(f"v_lshlrev_b32 v15, 4, v3")
    a(f"v_add3_u32 v14, v14, v15, s36")
    a(f"s_mul_i32 s40, s{S_MEM}, 10")
    a(f"s_mul_i32 s41, s37, 5")
    a(f"s_add_u32 s40, s40, s41")
    for p in range(5):
        a(f"s_add_u32 s41, s40, {p}")
        a(f"s_lshr_b32 s44, s41, 3")
        a(f"s_lshl_b32 s44, s44, 13")
        a(f"s_and_b32 s45, s41, 3")
        a(f"s_lshl_b32 s45, s45, 8")
        a(f"s_add_u32 s44, s44, s45")
        a(f"s_bfe_u32 s45, s41, 0x10002")
        a(f"s_lshl_b32 s45, s45, 3")
        a(f"s_add_u32 s44, s44, s45")
        a(f"s_add_u32 s44, s44, s{S_O}")
        a.vmem(f"buffer_store_dwordx2 v[{OP+2*p}:{OP+2*p+1}], v14, {SRD}, s44 offen", "ost")

def gen_gdown(a, which, final=None):
    KSH = 10 if which == 2 else 27
    ACT = S_O if which == 2 else S_H
    ACC = 32; SLOT = 72
    def acc(j, nt): return ACC + (j * 5 + nt) * 4
    def areg(s, j): return (s * 2 + j) * 4
    XCH = 0 if which == 2 else 0
    WB = 49152 if which == 2 else 0
    a.c(f"---- G{which} prologue")
    a(f"s_lshr_b32 s32, s{S_WAVE}, 1")
    a(f"s_and_b32 s33, s{S_WAVE}, 1")
    a(f"s_lshr_b32 s34, s{S_MEM}, 3")
    a(f"s_and_b32 s35, s{S_MEM}, 7")
    a(f"s_lshl_b32 s36, s34, 2")
    a(f"s_lshl_b32 s37, s33, 1")
    a(f"s_add_u32 s36, s36, s37")
    if which == 2:
        a(f"s_mul_i32 s40, s35, 102400")
        a(f"s_mul_i32 s41, s{S_WAVE}, 25600")
        a(f"s_add_u32 s40, s40, s41")
        a(f"s_add_u32 s40, s40, {WO}")
        a(f"s_add_u32 s41, s41, {WB}")
        for i in range(25):
            if i % 4 == 0:
                a(f"s_add_u32 m0, s41, {i*1024}")
                a(f"s_add_u32 s42, s40, {i*1024}")
            a.vmem(f"buffer_load_dwordx4 v1, {SRD}, s42 offen offset:{(i%4)*1024} lds", ("w", 0))
    else:
        a(f"s_mul_i32 s40, s35, 276480")
        a(f"s_add_u32 s40, s40, {WD}")
        a(f"s_lshl_b32 s41, s{S_WAVE}, 3")
        a(f"s_cmp_eq_u32 s{S_WAVE}, 3")
        a(f"s_cselect_b32 s41, 23, s41")
        a(f"s_lshl_b32 s41, s41, 10")
        a(f"s_add_u32 s40, s40, s41")
        a(f"s_cmp_lt_u32 s{S_WAVE}, 2")
        a(f"s_cselect_b32 s43, 3, 2")
        a(f"s_lshl_b32 s43, s43, 10")
    def dma_stage(st):
        slot = st % 5
        a(f"s_add_u32 m0, s41, {slot*30720}")
        a(f"s_add_u32 s42, s40, {st*30720}")
        for i in range(4):
            a.vmem(f"buffer_load_dwordx4 v1, {SRD}, s42 offen offset:{i*1024} lds", ("w", st))
        a(f"s_add_u32 m0, s41, {slot*30720 + 4096}")
        a(f"s_add_u32 s42, s40, {st*30720 + 4096}")
        for i in range(3):
            a.vmem(f"buffer_load_dwordx4 v1, {SRD}, s42 offen offset:{i*1024} lds", ("w", st))
        a(f"s_add_u32 m0, m0, s43")
        a(f"s_add_u32 s42, s42, s43")
        a.vmem(f"buffer_load_dwordx4 v1, {SRD}, s42 offen lds", ("w", st))
    if which == 4:
        for st in range(5): dma_stage(st)
    a(f"s_mul_i32 s44, s32, {KSH*8192}")
    a(f"s_lshl_b32 s45, s36, 10")
    a(f"s_add_u32 s44, s44, s45")
    a(f"s_add_u32 s44, s44, s{ACT}")
    for s in range(KSH):
        for j in range(2):
            r = areg(s, j)
            a.vmem(f"buffer_load_dwordx4 a[{r}:{r+3}], v1, {SRD}, s44 offen offset:{j*1024} sc1", ("a", s))
        if s < KSH - 1: a(f"s_add_u32 s44, s44, 8192")
    RES = 100
    a(f"s_add_u32 s46, s36, s32")
    a(f"s_mul_i32 s47, s35, 5")
    def piece_off(dst, nt, base_sreg):
        a(f"s_add_u32 s50, s47, {nt}")
        a(f"s_lshr_b32 s51, s50, 1")
        a(f"s_lshl_b32 s51, s51, 13")
        a(f"s_and_b32 s50, s50, 1")
        a(f"s_lshl_b32 s50, s50, 3")
        a(f"s_add_u32 s51, s51, s50")
        a(f"s_lshl_b32 s50, s46, 10")
        a(f"s_add_u32 s51, s51, s50")
        a(f"s_add_u32 s{dst}, s51, s{base_sreg}")
    resbase = S_XIN if which == 2 else S_X1
    for nt in range(5):
        piece_off(52, nt, resbase)
        a.vmem(f"buffer_load_dwordx2 v[{RES+2*nt}:{RES+2*nt+1}], v1, {SRD}, s52 offen sc1", "res")
    for r in range(ACC, ACC + 40): a(f"v_mov_b32 v{r}, 0")
    if which == 2:
        a(f"s_mul_i32 s48, s32, 51200")
        a(f"s_add_u32 s48, s48, {WB}")
        a(f"v_add_u32 v5, s48, v1")
    else:
        a(f"s_mul_i32 s48, s32, 15360")
        a(f"v_add_u32 v5, s48, v1")
        a(f"v_add_u32 v6, 61440, v5")
        a(f"v_add_u32 v7, 122880, v5")
    nfr = KSH * 5
    def read_fn(f, sl):
        s, nt = divmod(f, 5)
        if which == 2:
            a.lds(f"ds_read_b128 v[{sl}:{sl+3}], v5 offset:{(s*5+nt)*1024}", ("fr", f))
        else:
            st, s3 = divmod(s, 3); slot = st % 5
            base = ["v5", "v5", "v6", "v6", "v7"][slot]
            a.lds(f"ds_read_b128 v[{sl}:{sl+3}], {base} offset:{(slot%2)*30720 + (s3*5+nt)*1024}", ("fr", f))
    def mfma_fn(f, sl):
        s, nt = divmod(f, 5)
        if nt == 0 and a.has_vm(("a", s)): a.wait_vm(("a", s))
        for j in range(2):
            d = acc(j, nt); r = areg(s, j)
            a(f"{MF} v[{d}:{d+3}], v[{sl}:{sl+3}], a[{r}:{r+3}], v[{d}:{d+3}]")
    def pre_hook(f):
        if which == 2:
            if f == 0:
                a.wait_vm(("w", 0)); a("s_barrier")
        else:
            if f % 15 == 0:
                st = f // 15
                if a.has_vm(("w", st)): a.wait_vm(("w", st))
                a("s_barrier")
                if st >= 2 and st + 3 < 9: dma_stage(st + 3)
    a.stamp(2)
    stream_loop(a, nfr, read_fn, mfma_fn, SLOT, PD=5, pre_hook=pre_hook)
    a.stamp(3)
    a.c(f"---- G{which} exchange + epilogue")
    a("s_barrier")
    a(f"s_mul_i32 s48, s{S_WAVE}, 5120")
    a(f"v_add_u32 v5, s48, v1")
    a(f"s_xor_b32 s49, s{S_WAVE}, 2")
    a(f"s_mul_i32 s49, s49, 5120")
    a(f"v_add_u32 v6, s49, v1")
    R = 72
    RCV = 112
    l1 = a.newlabel("kh1"); l2 = a.newlabel("khd")
    a("s_nop 7")
    a(f"s_cmp_lg_u32 s32, 0")
    a(f"s_cbranch_scc1 {l1}")
    for kh in range(2):
        if kh == 1: a.label(l1)
        for nt in range(5):
            d = acc(1 - kh, nt)
            a(f"ds_write_b128 v5, v[{d}:{d+3}] offset:{XCH + nt*1024}")
        a("s_waitcnt lgkmcnt(0)")
        a("s_barrier")
        for nt in range(5):
            a(f"ds_read_b128 v[{RCV+4*nt}:{RCV+4*nt+3}], v6 offset:{XCH + nt*1024}")
        a("s_waitcnt lgkmcnt(0)")
        for nt in range(5):
            d = acc(kh, nt)
            for h in range(2):
                a(f"v_pk_add_f32 v[{R+4*nt+2*h}:{R+4*nt+2*h+1}], v[{d+2*h}:{d+2*h+1}], v[{RCV+4*nt+2*h}:{RCV+4*nt+2*h+1}]")
        if kh == 0: a(f"s_branch {l2}")
    a.label(l2)
    a.lg = []
    if a.has_vm("res"): a.wait_vm("res")
    a(f"s_mov_b32 s53, 0x00003f80")
    a(f"s_mov_b32 s54, 0x3f800000")
    XP = 132
    for nt in range(5):
        for h in range(2):
            rr = RES + 2 * nt + h
            a(f"v_dot2_f32_bf16 v{R+4*nt+2*h}, v{rr}, s53, v{R+4*nt+2*h}")
            a(f"v_dot2_f32_bf16 v{R+4*nt+2*h+1}, v{rr}, s54, v{R+4*nt+2*h+1}")
    a("s_nop 2")
    for nt in range(5):
        for h in range(2):
            a(f"v_cvt_pk_bf16_f32 v{XP+2*nt+h}, v{R+4*nt+2*h}, v{R+4*nt+2*h+1}")
    rowmajor = (which == 4 and final == 'rowmajor')
    if not rowmajor:
        outbase = S_X1 if which == 2 else S_XO
        for nt in range(5):
            piece_off(52, nt, outbase)
            a.vmem(f"buffer_store_dwordx2 v[{XP+2*nt}:{XP+2*nt+1}], v1, {SRD}, s52 offen", "xst")
        a(f"v_mov_b32 v8, {hex(ONES)}")
        a(f"v_dot2_f32_bf16 v10, v{XP}, v8, 0")
        a(f"v_dot2_f32_bf16 v11, v{XP}, v{XP}, 0")
        for i in range(1, 10):
            a(f"v_dot2_f32_bf16 v10, v{XP+i}, v8, v10")
            a(f"v_dot2_f32_bf16 v11, v{XP+i}, v{XP+i}, v11")
        a("s_nop 2")
        xreduce_g(a, [10, 11], [12, 13])
        stb = S_ST1 if which == 2 else S_STO
        a(f"s_lshl_b32 s50, s46, 10")
        a(f"s_lshr_b32 s51, s35, 1")
        a(f"s_lshl_b32 s51, s51, 8")
        a(f"s_add_u32 s50, s50, s51")
        a(f"s_and_b32 s51, s35, 1")
        a(f"s_lshl_b32 s51, s51, 3")
        a(f"s_add_u32 s50, s50, s51")
        a(f"s_add_u32 s50, s50, s{stb}")
        a(f"v_lshlrev_b32 v12, 4, v3")
        a(f"v_cmp_eq_u32 vcc, 0, v4")
        a(f"s_and_saveexec_b64 s[38:39], vcc")
        a.vmem(f"buffer_store_dwordx2 v[10:11], v12, {SRD}, s50 offen", "xst")
        a(f"s_mov_b64 exec, s[38:39]")
        if which == 4:
            lab = a.newlabel("nohalo")
            a(f"s_cmp_lg_u32 s46, 7")
            a(f"s_cbranch_scc1 {lab}")
            a(f"s_mul_i32 s55, s{S_TEAM}, 20480")
            a(f"s_add_u32 s55, s55, {HALO2}")
            for nt in range(5):
                a(f"s_add_u32 s50, s47, {nt}")
                a(f"s_lshr_b32 s51, s50, 1")
                a(f"s_lshl_b32 s51, s51, 10")
                a(f"s_and_b32 s50, s50, 1")
                a(f"s_lshl_b32 s50, s50, 3")
                a(f"s_add_u32 s51, s51, s50")
                a(f"s_add_u32 s51, s51, s55")
                a(f"buffer_store_dwordx2 v[{XP+2*nt}:{XP+2*nt+1}], v1, {SRD}, s51 offen sc1")
            a(f"s_lshl_b32 s55, s{S_TEAM}, 10")
            a(f"s_add_u32 s55, s55, {HST2}")
            a(f"s_lshr_b32 s51, s35, 1")
            a(f"s_lshl_b32 s51, s51, 8")
            a(f"s_add_u32 s55, s55, s51")
            a(f"s_and_b32 s51, s35, 1")
            a(f"s_lshl_b32 s51, s51, 3")
            a(f"s_add_u32 s55, s55, s51")
            a(f"s_and_saveexec_b64 s[38:39], vcc")
            a(f"buffer_store_dwordx2 v[10:11], v12, {SRD}, s55 offen sc1")
            a(f"s_mov_b64 exec, s[38:39]")
            a.label(lab)
    else:
        a(f"v_mul_u32_u24 v8, 1280, v3")
        a(f"v_lshlrev_b32 v9, 3, v4")
        a(f"v_add_u32 v8, v8, v9")
        a(f"s_lshl_b32 s50, s{S_TEAM}, 3")
        a(f"s_add_u32 s50, s50, s46")
        a(f"s_mul_i32 s50, s50, 20480")
        a(f"s_mul_i32 s51, s35, 160")
        a(f"s_add_u32 s50, s50, s51")
        for nt in range(5):
            a.vmem(f"buffer_store_dwordx2 v[{XP+2*nt}:{XP+2*nt+1}], v8, {SRD_O}, s50 offen offset:{nt*32}", "xst")

G3_RING = 20480
def gen_g3(a):
    ACC = 32; SLOT = 144
    def acc(p, gu, j): return ACC + ((p * 2 + gu) * 2 + j) * 4
    def areg(ks, j): return (ks * 2 + j) * 4
    a.c("---- G3 prologue")
    a(f"s_mul_i32 s40, s{S_MEM}, 286720")
    a(f"s_mul_i32 s41, s{S_WAVE}, 7168")
    a(f"s_add_u32 s40, s40, s41")
    a(f"s_add_u32 s40, s40, {WG}")
    a(f"s_add_u32 s41, s41, {G3_RING}")
    def dma_stage(s):
        slot = s % 5
        for hf in range(2):
            a(f"s_add_u32 m0, s41, {slot*28672 + hf*4096}")
            a(f"s_add_u32 s42, s40, {s*28672 + hf*4096}")
            for i in range(4 if hf == 0 else 3):
                a.vmem(f"buffer_load_dwordx4 v1, {SRD}, s42 offen offset:{i*1024} lds", ("w", s))
    CS = 144
    a(f"s_mul_i32 s43, s{S_MEM}, {7*2*64}")
    a(f"s_add_u32 s43, s43, {CS2}")
    a(f"v_lshlrev_b32 v5, 4, v4")
    for half in range(2):
        for i in range(14):
            r = CS + half * 56 + 4 * i
            a.vmem(f"buffer_load_dwordx4 v[{r}:{r+3}], v5, {SRD}, s43 offen offset:{i*64}", "cs")
        if half == 0: a(f"s_add_u32 s43, s43, {112*2*64}")
    a(f"s_lshl_b32 s44, s{S_WAVE}, 11")
    a(f"s_add_u32 s44, s44, s{S_ST1}")
    a.vmem(f"buffer_load_dwordx4 v[8:11], v1, {SRD}, s44 offen sc1", "st")
    a.vmem(f"buffer_load_dwordx4 v[12:15], v1, {SRD}, s44 offen offset:1024 sc1", "st")
    a(f"s_lshl_b32 s44, s{S_WAVE}, 11")
    a(f"s_add_u32 s44, s44, s{S_X1}")
    def aload(ks):
        a(f"s_add_u32 s45, s44, {ks*8192}")
        for j in range(2):
            r = areg(ks, j)
            a.vmem(f"buffer_load_dwordx4 a[{r}:{r+3}], v1, {SRD}, s45 offen offset:{j*1024} sc1", ("a", ks))
    for s in range(5):
        dma_stage(s); aload(2 * s); aload(2 * s + 1)
    a.wait_vm("st")
    stats_finish(a, 8, 24, 28)
    stats_finish(a, 12, 26, 28)
    for i in range(28):
        a(f"v_pk_add_f32 v[{CS+2*i}:{CS+2*i+1}], v[{CS+2*i}:{CS+2*i+1}], v[{CS+56+2*i}:{CS+56+2*i+1}]")
    for p in range(7):
        for gu in range(2):
            c = CS + (p * 2 + gu) * 4
            for j in range(2):
                d = acc(p, gu, j); m = 24 + 2 * j
                for h in range(2):
                    a(f"v_pk_mul_f32 v[{d+2*h}:{d+2*h+1}], v[{c+2*h}:{c+2*h+1}], v[{m}:{m+1}] op_sel_hi:[1,0] neg_lo:[0,1] neg_hi:[0,1]")
    for ks in range(10, 20): aload(ks)
    a(f"v_add_u32 v5, {G3_RING}, v1")
    a(f"v_add_u32 v6, {G3_RING + 57344}, v1")
    a(f"v_add_u32 v7, {G3_RING + 114688}, v1")
    def read_fn(f, sl):
        ks, idx = divmod(f, 14); s = ks // 2; slot = s % 5
        base = ["v5", "v5", "v6", "v6", "v7"][slot]
        a.lds(f"ds_read_b128 v[{sl}:{sl+3}], {base} offset:{(slot%2)*28672 + ((ks&1)*14 + idx)*1024}", ("fr", f))
    def mfma_fn(f, sl):
        ks, idx = divmod(f, 14); p, gu = idx >> 1, idx & 1
        if idx == 0 and a.has_vm(("a", ks)): a.wait_vm(("a", ks))
        for j in range(2):
            d = acc(p, gu, j); r = areg(ks, j)
            a(f"{MF} v[{d}:{d+3}], v[{sl}:{sl+3}], a[{r}:{r+3}], v[{d}:{d+3}]")
    def pre_hook(f):
        if f % 28 == 0:
            s = f // 28
            if a.has_vm(("w", s)): a.wait_vm(("w", s))
            a("s_barrier")
            if s >= 2 and s + 3 < 10: dma_stage(s + 3)
    a.stamp(2)
    stream_loop(a, 280, read_fn, mfma_fn, SLOT, PD=5, pre_hook=pre_hook)
    a.stamp(3)
    a.c("---- G3 epilogue (GEGLU)")
    import math
    c0 = -2.0 * math.sqrt(2.0 / math.pi) * math.log2(math.e)
    c1 = c0 * 0.044715
    a(f"v_mov_b32 v8, {c0!r}")
    a(f"v_mov_b32 v9, {c0!r}")
    a(f"v_mov_b32 v10, {c1!r}")
    a(f"v_mov_b32 v11, {c1!r}")
    for j in range(2):
        a(f"v_rcp_f32 v{16+2*j}, v{25+2*j}")
        a("s_nop 0")
        a(f"v_mov_b32 v{17+2*j}, v{16+2*j}")
    a(f"s_mul_i32 s46, s{S_MEM}, 7")
    a(f"s_lshl_b32 s47, s{S_WAVE}, 11")
    a(f"s_add_u32 s47, s47, s{S_H}")
    a("s_nop 7")
    T0 = 144
    for p in range(7):
        lab = a.newlabel("g3skip")
        a(f"s_add_u32 s48, s46, {p}")
        if p >= 3:
            a(f"s_cmp_ge_u32 s48, 108")
            a(f"s_cbranch_scc1 {lab}")
        a(f"s_lshr_b32 s49, s48, 1")
        a(f"s_lshl_b32 s49, s49, 13")
        a(f"s_and_b32 s50, s48, 1")
        a(f"s_lshl_b32 s50, s50, 3")
        a(f"s_add_u32 s49, s49, s50")
        a(f"s_add_u32 s49, s49, s47")
        for j in range(2):
            g = acc(p, 0, j); u = acc(p, 1, j); m = 24 + 2 * j; ir = 16 + 2 * j
            t = T0 + j * 16
            for h in range(2):
                gg = f"v[{g+2*h}:{g+2*h+1}]"; uu = f"v[{u+2*h}:{u+2*h+1}]"
                tt = f"v[{t+8*h}:{t+8*h+1}]"; pp = f"v[{t+8*h+2}:{t+8*h+3}]"; ee = t + 8 * h + 4
                a(f"v_pk_mul_f32 {gg}, {gg}, v[{m}:{m+1}] op_sel:[0,1] op_sel_hi:[1,1]")
                a(f"v_pk_mul_f32 {tt}, {gg}, {gg}")
                a(f"v_pk_fma_f32 {pp}, {tt}, v[10:11], v[8:9]")
                a(f"v_pk_mul_f32 {pp}, {pp}, {gg}")
                a(f"v_exp_f32 v{ee}, v{t+8*h+2}")
                a(f"v_exp_f32 v{ee+1}, v{t+8*h+3}")
                a(f"v_pk_mul_f32 {uu}, {uu}, {gg}")
                a(f"v_pk_fma_f32 v[{ee}:{ee+1}], v[{ee}:{ee+1}], v[{ir}:{ir+1}], v[{ir}:{ir+1}]")
                a(f"v_rcp_f32 v{ee}, v{ee}")
                a(f"v_rcp_f32 v{ee+1}, v{ee+1}")
                a("s_nop 0")
                a(f"v_pk_mul_f32 {uu}, {uu}, v[{ee}:{ee+1}]")
            a(f"v_cvt_pk_bf16_f32 v{t+6}, v{u}, v{u+1}")
            a(f"v_cvt_pk_bf16_f32 v{t+7}, v{u+2}, v{u+3}")
            a.vmem(f"buffer_store_dwordx2 v[{t+6}:{t+7}], v1, {SRD}, s49 offen offset:{j*1024}", "hst")
        a.label(lab)

def kernel_wrap(name, body_fn, nv=512, nacc=256, ns=96, slot=0):
    a = Asm()
    a(f".globl {name}\n.p2align 8\n.type {name},@function\n{name}:")
    a("s_cmp_ge_u32 s2, 256")
    a(f"s_cbranch_scc1 L_end_{name}")
    a.stamp(0)
    body_fn(a)
    a.stamp(5)
    a("s_waitcnt vmcnt(0)")
    a.stamp(6)
    a.dump_stamps(STAMPS + slot*256*64)
    a.label(f"L_end_{name}")
    a("s_endpgm")
    desc = f""".section .rodata,"a"
.p2align 6
.amdhsa_kernel {name}
  .amdhsa_next_free_vgpr {nv}
  .amdhsa_next_free_sgpr {ns}
  .amdhsa_accum_offset {nacc}
  .amdhsa_group_segment_fixed_size 0
  .amdhsa_kernarg_size 80
  .amdhsa_user_sgpr_count 2
  .amdhsa_user_sgpr_kernarg_segment_ptr 1
  .amdhsa_system_sgpr_workgroup_id_x 1
.end_amdhsa_kernel
.text
"""
    return a.text() + "\n" + desc

def standalone(which, layer):
    def body(a):
        prologue(a); set_layer(a, layer)
        if which == 1: gen_g1(a)
        elif which == 2: gen_gdown(a, 2)
        elif which == 3: gen_g3(a)
        else: gen_gdown(a, 4, final=('frag' if layer == 0 else 'rowmajor'))
    return kernel_wrap(f"g{which}l{layer}_kernel", body, slot=layer*4+which-1)
```
